```python
import torch

def _softmax(x, axis=-1):
    return torch.softmax(x, dim=axis)
def _gelu(x):
    return torch.nn.functional.gelu(x, approximate="tanh")
def _silu(x):
    return torch.nn.functional.silu(x)
def _sigmoid(x):
    return torch.sigmoid(x)
def _layernorm(x, axis=-1, eps=1e-5):
    m = x.mean(dim=axis, keepdim=True)
    v = x.var(dim=axis, keepdim=True, unbiased=False)
    return (x - m) / torch.sqrt(v + eps)
def _scatter_add(tgt, idx, src, axis=0):
    return tgt.clone().index_add_(axis, idx, src)
def _segment_sum(src, seg, n):
    out = torch.zeros((n,) + src.shape[1:], dtype=src.dtype)
    return out.index_add_(0, seg, src)
def _pad(x, pw):
    flat = tuple(v for pair in reversed(pw) for v in pair)
    return torch.nn.functional.pad(x, flat)

kernel_name = 'gated_mix__linear_attn_block__glu_gated_bilinear__prompt'

def setup_inputs():

    _w = (lambda a: (lambda t: t.to(torch.bfloat16) if t.is_floating_point() else t)(torch.as_tensor(a)))
    def _A_setup():
        B, S, D = 1, 2048, 512
        return {
            "x": _w((lambda *s: torch.randn(*s, dtype=torch.bfloat16) * 0.05)(B, S, D)),
            "wqkv": _w((lambda *s: torch.randn(*s, dtype=torch.bfloat16) * 0.8)(D, 3 * D)),
            "wo": _w((lambda *s: torch.randn(*s, dtype=torch.bfloat16) * 0.05)(D, D)),
        }
    _A_in = _A_setup()

    def _B_setup():
        B, S, D, F = 1, 2048, 512, 1792
        return {
            "x": _w((lambda *s: torch.randn(*s, dtype=torch.bfloat16) * 0.05)(B, S, D)),
            "w_gate": _w((lambda *s: torch.randn(*s, dtype=torch.bfloat16) * 1.6)(D, F) * (D ** -0.5)),
            "w_up": _w((lambda *s: torch.randn(*s, dtype=torch.bfloat16) * 1.6)(D, F) * (D ** -0.5)),
            "w_down": _w((lambda *s: torch.randn(*s, dtype=torch.bfloat16) * 1.6)(F, D) * (F ** -0.5)),
        }
    _B_in = _B_setup()

    return {
        "A_x": _A_in["x"],
        "A_wqkv": _A_in["wqkv"],
        "A_wo": _A_in["wo"],
        "B_x": _B_in["x"],
        "B_w_gate": _B_in["w_gate"],
        "B_w_up": _B_in["w_up"],
        "B_w_down": _B_in["w_down"],
        "gate_w": _w((lambda *s: torch.randn(*s, dtype=torch.bfloat16) * 0.05)(512) * 16.0),
    }

def reference(A_x, A_wqkv, A_wo, B_x, B_w_gate, B_w_up, B_w_down, gate_w):
    def _A_ref(x, wqkv, wo):
        B, S, D = x.shape
        H = 32; Dh = D // H
        qkv = (lambda x, *d: x.permute(*d))((x @ wqkv).reshape(B, S, 3, H, Dh), 2, 0, 3, 1, 4)
        q, k, v = qkv[0], qkv[1], qkv[2]
        phi = lambda t: torch.where(t > 0, t + 1, torch.exp(t)) + 1e-6
        pq, pk = phi(q), phi(k)
        kv = torch.einsum("bhsd,bhse->bhde", pk, v)
        z = torch.einsum("bhsd->bhd", pk)
        num = torch.einsum("bhqd,bhde->bhqe", pq, kv)
        den = torch.einsum("bhqd,bhd->bhq", pq, z)[..., None] + 1e-6
        o = num / den
        return (lambda x, *d: x.permute(*d))(o, 0, 2, 1, 3).reshape(B, S, D) @ wo

    def _B_ref(x, w_gate, w_up, w_down):
        g = torch.einsum("bsd,df->bsf", x, w_gate)
        u = torch.einsum("bsd,df->bsf", x, w_up)
        h = g * u
        return torch.einsum("bsf,fd->bsd", h, w_down)

    x = A_x
    g = _sigmoid((x * gate_w).sum(-1, keepdims=True))
    a = _A_ref(x, A_wqkv, A_wo)
    b = _B_ref(x, B_w_gate, B_w_up, B_w_down)
    return g * a + (1 - g) * b
```

```python
import sys

NAME = 'gated_mix__linear_attn_block__glu_gated_bilinear__prompt'

WS_A2 = 0
WS_KVP = 0x00A00000
WS_KVZ = 0x00B00000
WS_G = 0x00B10000
WS_STAMP = 0x00C00000
WS_SIZE = 0x01000000

LOG2E = 0x3FB8AA3B
NLOG2E = 0xBFB8AA3B
EPS = 0x358637BD
ONES = 0x3F803F80


class Asm:
    def __init__(self):
        self.l = []

    def __call__(self, s):
        self.l.append('    ' + s)

    def label(self, s):
        self.l.append(s + ':')

    def c(self, s):
        self.l.append('    ; ' + s)

    def raw(self, s):
        self.l.append(s)

    def text(self):
        return '\n'.join(self.l) + '\n'


def vr(b, n=1):
    return 'v%d' % b if n == 1 else 'v[%d:%d]' % (b, b + n - 1)


def sr(b, n=1):
    return 's%d' % b if n == 1 else 's[%d:%d]' % (b, b + n - 1)


def srd(a, d, ptr, nbytes):
    a('s_mov_b32 s%d, s%d' % (d, ptr))
    a('s_and_b32 s%d, s%d, 0xffff' % (d + 1, ptr + 1))
    if isinstance(nbytes, str):
        a('s_mov_b32 s%d, %s' % (d + 2, nbytes))
    else:
        a('s_mov_b32 s%d, 0x%x' % (d + 2, nbytes))
    a('s_mov_b32 s%d, 0x00020000' % (d + 3))


def mfma(a, d, x, y, c=None):
    cc = vr(d, 16) if c is None else c
    a('v_mfma_f32_32x32x16_bf16 %s, %s, %s, %s' % (vr(d, 16), vr(x, 4), vr(y, 4), cc))


def phi_pairs(a, regs, tmp, s_l2e, s_eps):
    n = len(regs)
    for i, r in enumerate(regs):
        a('v_pk_mul_f32 %s, %s, %s' % (vr(tmp + 2 * i, 2), vr(r, 2), sr(s_l2e, 2)))
    for i, r in enumerate(regs):
        a('v_exp_f32_e64 %s, %s clamp' % (vr(tmp + 2 * i), vr(tmp + 2 * i)))
        a('v_max_f32 %s, 0, %s' % (vr(r), vr(r)))
        a('v_exp_f32_e64 %s, %s clamp' % (vr(tmp + 2 * i + 1), vr(tmp + 2 * i + 1)))
        a('v_max_f32 %s, 0, %s' % (vr(r + 1), vr(r + 1)))
    for i, r in enumerate(regs):
        a('v_pk_add_f32 %s, %s, %s' % (vr(r, 2), vr(r, 2), sr(s_eps, 2)))
    for i, r in enumerate(regs):
        a('v_pk_add_f32 %s, %s, %s' % (vr(r, 2), vr(r, 2), vr(tmp + 2 * i, 2)))


SLOT = 53248
XREG = 0
WREG = 32768
TG = 5120


def gen_k1(a):
    K = 'k1_kernel'
    a.raw('.globl %s' % K)
    a.raw('.p2align 8')
    a.raw('.type %s,@function' % K)
    a.label(K)
    S_X, S_G, S_U, S_KV, S_WS, S_GW = 16, 20, 24, 28, 32, 36
    RT, CT, WV, RB, GOFF, UOFF = 40, 41, 42, 43, 44, 45
    L2E, EP = 46, 48
    T0, T1, T2, T3 = 50, 51, 52, 53
    SX, SG, SKV = 54, 55, 56
    XL, WL = 57, 58
    SLOTO, CNT = 59, 60
    ISQ = 61
    KMASK = 62
    a('s_cmp_ge_u32 s2, 256')
    a('s_cbranch_scc1 k1_end')
    a('s_load_dwordx4 s[4:7], s[0:1], 0')
    a('s_load_dwordx4 s[8:11], s[0:1], 32')
    a('s_load_dwordx2 s[12:13], s[0:1], 56')
    a('s_load_dwordx2 s[14:15], s[0:1], 80')
    a('v_lshrrev_b32 v2, 6, v0')
    a('v_and_b32 v1, 63, v0')
    a('v_readfirstlane_b32 s%d, v2' % WV)
    a('s_and_b32 s%d, s2, 7' % T0)
    a('s_lshr_b32 s%d, s2, 3' % T1)
    a('s_and_b32 s%d, s%d, 1' % (T2, T0))
    a('s_lshl_b32 s%d, s%d, 2' % (T2, T2))
    a('s_and_b32 s%d, s%d, 3' % (T3, T1))
    a('s_add_u32 s%d, s%d, s%d' % (RT, T2, T3))
    a('s_lshr_b32 s%d, s%d, 1' % (T2, T0))
    a('s_lshl_b32 s%d, s%d, 3' % (T2, T2))
    a('s_lshr_b32 s%d, s%d, 2' % (T3, T1))
    a('s_add_u32 s%d, s%d, s%d' % (CT, T2, T3))
    a('s_mov_b32 s%d, 0x%x' % (L2E, LOG2E))
    a('s_mov_b32 s%d, 0x%x' % (L2E + 1, LOG2E))
    a('s_mov_b32 s%d, 0x%x' % (EP, EPS))
    a('s_mov_b32 s%d, 0x%x' % (EP + 1, EPS))
    a('v_and_b32 v2, 31, v1')
    a('v_lshrrev_b32 v3, 5, v1')
    a('v_and_b32 v4, 15, v1')
    a('v_bfe_u32 v5, v1, 4, 1')
    a('s_cmp_ge_u32 s%d, 4' % WV)
    a('s_cbranch_scc1 k1_B')

    XA0, WA0 = 64, 68
    XA, WA = 8, 12
    SETS = [16, 40]
    ACC = 128
    a.c('A wave: address setup')
    for r in range(128):
        a('v_mov_b32 v%d, 0' % (ACC + r))
    a('s_lshl_b32 s%d, s%d, 13' % (T0, WV))
    a('v_lshl_add_u32 v6, v2, 7, s%d' % T0)
    a('v_bfe_u32 v7, v2, 1, 3')
    a('v_xor_b32 v7, v7, v3')
    for t in range(4):
        a('v_xor_b32 v16, %d, v7' % (2 * t))
        a('v_lshl_add_u32 v%d, v16, 4, v6' % (XA0 + t))
    a('v_lshrrev_b32 v6, 2, v4')
    a('v_lshl_add_u32 v6, v3, 3, v6')
    a('v_lshlrev_b32 v6, 7, v6')
    a('v_lshl_add_u32 v6, v5, 11, v6')
    a('v_and_b32 v7, 3, v4')
    a('v_lshl_add_u32 v6, v7, 3, v6')
    a('v_add_u32 v6, 0x%x, v6' % WREG)
    a('v_lshrrev_b32 v7, 3, v4')
    a('v_lshl_or_b32 v7, v5, 1, v7')
    for b in range(4):
        a('v_xor_b32 v16, %d, v7' % b)
        a('v_lshl_add_u32 v%d, v16, 5, v6' % (WA0 + b))
    for t in range(8):
        a('v_mov_b32 v%d, v%d' % (XA + t, XA0 + t))
    a('s_mov_b32 s%d, 0' % SLOTO)
    a('s_mov_b32 s%d, 0' % CNT)
    a('s_waitcnt lgkmcnt(0)')
    srd(a, S_WS, 14, WS_SIZE)

    def a_reads(st, t):
        r = []
        r.append('ds_read_b128 %s, v%d' % (vr(st, 4), XA + t))
        r.append('ds_read_b64_tr_b16 %s, v%d offset:%d' % (vr(st + 8, 2), WA + 0, t * TG))
        r.append('ds_read_b64_tr_b16 %s, v%d offset:%d' % (vr(st + 10, 2), WA + 0, t * TG + 512))
        r.append('ds_read_b128 %s, v%d offset:4096' % (vr(st + 4, 4), XA + t))
        for b in range(1, 4):
            r.append('ds_read_b64_tr_b16 %s, v%d offset:%d' % (vr(st + 8 + 4 * b, 2), WA + b, t * TG))
            r.append('ds_read_b64_tr_b16 %s, v%d offset:%d' % (vr(st + 10 + 4 * b, 2), WA + b, t * TG + 512))
        return r

    def a_step(cur, reads):
        k = 0
        for b in range(4):
            for rb in range(2):
                mfma(a, ACC + (rb * 4 + b) * 16, cur + 8 + 4 * b, cur + 4 * rb)
                for _ in range(2):
                    if k < len(reads):
                        a(reads[k]); k += 1

    a('s_barrier')
    for r in a_reads(SETS[0], 0):
        a(r)
    a.label('k1_A_loop')
    for t in range(4):
        a('s_waitcnt lgkmcnt(0)')
        if t == 3:
            a('s_add_u32 s%d, s%d, %d' % (SLOTO, SLOTO, SLOT))
            a('s_cmp_eq_u32 s%d, %d' % (SLOTO, 3 * SLOT))
            a('s_cselect_b32 s%d, 0, s%d' % (SLOTO, SLOTO))
            a('s_barrier')
            for j in range(8):
                a('v_add_u32 v%d, s%d, v%d' % (XA + j, SLOTO, XA0 + j))
        a_step(SETS[t & 1], a_reads(SETS[(t + 1) & 1], (t + 1) & 3))
    a('s_add_u32 s%d, s%d, 1' % (CNT, CNT))
    a('s_cmp_lt_u32 s%d, 8' % CNT)
    a('s_cbranch_scc1 k1_A_loop')
    a('s_waitcnt lgkmcnt(0)')
    a('v_lshlrev_b32 v6, 4, v1')
    a('s_lshl_b32 s%d, s%d, 3' % (T0, RT))
    a('s_lshl_b32 s%d, s%d, 1' % (T1, WV))
    a('s_add_u32 s%d, s%d, s%d' % (T0, T0, T1))
    a('s_mul_i32 s%d, s%d, %d' % (T0, T0, 144 * 1024))
    a('s_cmp_ge_u32 s%d, 28' % CT)
    a('s_cbranch_scc1 k1_A_epiQ')
    a('s_lshl_b32 s%d, s%d, 12' % (T1, CT))
    a('s_add_u32 s%d, s%d, s%d' % (T0, T0, T1))
    a('s_add_u32 s%d, s%d, %d' % (T1, T0, 144 * 1024))
    a('s_nop 7')
    for b in range(4):
        for rb in range(2):
            base = ACC + (rb * 4 + b) * 16
            tmp = 16 + ((b * 2 + rb) % 4) * 4
            for j in range(4):
                a('v_pk_mul_f32 %s, %s, %s' % (vr(base + 2 * j, 2), vr(base + 2 * j, 2), vr(base + 8 + 2 * j, 2)))
            for j in range(4):
                a('v_cvt_pk_bf16_f32 v%d, v%d, v%d' % (tmp + j, base + 2 * j, base + 2 * j + 1))
            a('buffer_store_dwordx4 %s, v6, %s, s%d offen offset:%d' % (vr(tmp, 4), sr(S_WS, 4), T0 + rb, b * 1024))
    a('s_endpgm')
    a.label('k1_A_epiQ')
    a('s_sub_u32 s%d, s%d, 28' % (T1, CT))
    a('s_lshl_b32 s%d, s%d, 13' % (T1, T1))
    a('s_add_u32 s%d, s%d, s%d' % (T0, T0, T1))
    a('s_add_u32 s%d, s%d, %d' % (T0, T0, 112 * 1024))
    a('s_add_u32 s%d, s%d, %d' % (T1, T0, 4096))
    a('s_add_u32 s%d, s%d, %d' % (T2, T0, 144 * 1024))
    a('s_add_u32 s%d, s%d, %d' % (T3, T0, 144 * 1024 + 4096))
    a('s_nop 7')
    for b in range(4):
        for rb in range(2):
            base = ACC + (rb * 4 + b) * 16
            phi_pairs(a, [base + 2 * j for j in range(8)], 32, L2E, EP)
            tmp = 16 + ((b * 2 + rb) % 2) * 8
            for j in range(8):
                a('v_cvt_pk_bf16_f32 v%d, v%d, v%d' % (tmp + j, base + 2 * j, base + 2 * j + 1))
            a('buffer_store_dwordx4 %s, v6, %s, s%d offen offset:%d' % (vr(tmp, 4), sr(S_WS, 4), T0 + 2 * rb, b * 1024))
            a('buffer_store_dwordx4 %s, v6, %s, s%d offen offset:%d' % (vr(tmp + 4, 4), sr(S_WS, 4), T0 + 2 * rb + 1, b * 1024))
    a('s_endpgm')

    a.label('k1_B')
    VX, VG, VU, VKV = 64, 72, 74, 76
    BXA, BKA = 8, 12
    BXA0, BKA0 = 80, 84
    BSET = [16, 28]
    BACC = 128
    GX, GWr = 96, 104
    a('s_sub_u32 s%d, s%d, 4' % (WV, WV))
    a('s_cmp_ge_u32 s%d, 28' % CT)
    a('s_cselect_b32 s%d, 1, 0' % ISQ)
    a('s_cselect_b32 s%d, 6, 7' % RB)
    a('s_lshl_b32 s%d, s%d, 9' % (RB, RB))
    a('s_lshl_b32 s%d, s%d, 7' % (T0, CT))
    a('s_sub_u32 s%d, s%d, 28' % (T1, CT))
    a('s_lshl_b32 s%d, s%d, 8' % (T1, T1))
    a('s_add_u32 s%d, s%d, 128' % (T2, T1))
    a('s_cmp_eq_u32 s%d, 1' % ISQ)
    a('s_cselect_b32 s%d, s%d, s%d' % (GOFF, T1, T0))
    a('s_cselect_b32 s%d, s%d, s%d' % (UOFF, T2, T0))
    a('v_lshrrev_b32 v6, 3, v1')
    a('v_and_b32 v7, 7, v1')
    a('v_lshrrev_b32 v16, 4, v1')
    a('v_xor_b32 v17, v7, v16')
    a('v_xor_b32 v18, 4, v17')
    a('s_lshl_b32 s%d, s%d, 8' % (T0, RT))
    a('s_lshl_b32 s%d, s%d, 6' % (T1, WV))
    a('s_add_u32 s%d, s%d, s%d' % (T0, T0, T1))
    a('s_lshl_b32 s%d, s%d, 10' % (T0, T0))
    a('v_lshl_add_u32 v19, v6, 10, s%d' % T0)
    a('v_lshl_add_u32 v20, v17, 4, v19')
    a('v_lshl_add_u32 v21, v18, 4, v19')
    for jj in range(8):
        a('v_add_u32 v%d, 0x%x, v%d' % (VX + jj, jj * 8192 - (jj & 3) * 1024, 20 + (jj & 1)))
    a('s_lshl_b32 s%d, s%d, 4' % (T0, WV))
    a('v_add_u32 v19, s%d, v6' % T0)
    a('v_mul_lo_u32 v19, v19, s%d' % RB)
    a('v_and_b32 v20, 1, v7')
    a('v_lshl_add_u32 v19, v20, 4, v19')
    a('v_lshrrev_b32 v20, 1, v7')
    a('v_xor_b32 v20, v20, v5')
    a('v_xor_b32 v21, 2, v20')
    a('v_lshl_add_u32 v%d, v20, 5, v19' % VG)
    a('v_lshl_add_u32 v%d, v21, 5, v19' % VU)
    a('v_add_u32 v%d, s%d, v%d' % (VG, GOFF, VG))
    a('v_add_u32 v%d, s%d, v%d' % (VU, UOFF, VU))
    a('s_lshl_b32 s%d, s%d, 3' % (T1, RB))
    a('s_sub_u32 s%d, s%d, 1024' % (T1, T1))
    a('v_add_u32 v%d, s%d, v%d' % (VG + 1, T1, VG))
    a('v_add_u32 v%d, s%d, v%d' % (VU + 1, T1, VU))
    a('v_lshrrev_b32 v19, 2, v1')
    a('v_add_u32 v19, s%d, v19' % T0)
    a('v_mul_u32_u24 v19, 3072, v19')
    a('v_bfe_u32 v20, v1, 1, 1')
    a('v_lshl_add_u32 v19, v20, 10, v19')
    a('v_and_b32 v20, 1, v1')
    a('v_lshl_add_u32 v19, v20, 4, v19')
    a('s_lshl_b32 s%d, s%d, 5' % (T1, CT))
    a('s_add_u32 s%d, s%d, 1024' % (T1, T1))
    a('v_add_u32 v%d, s%d, v19' % (VKV, T1))
    a('s_lshl_b32 s%d, s%d, 13' % (XL, WV))
    a('s_mul_i32 s%d, s%d, %d' % (WL, WV, TG))
    a('s_add_u32 s%d, s%d, %d' % (WL, WL, WREG))
    a('s_mov_b32 s%d, 0' % SX)
    a('s_mov_b32 s%d, 0' % SG)
    a('s_mov_b32 s%d, 0' % SKV)
    a('s_lshl_b32 s%d, s%d, 6' % (T3, RB))
    a('s_waitcnt lgkmcnt(0)')
    srd(a, S_X, 4, 2048 * 1024)
    a('s_cmp_eq_u32 s%d, 1' % ISQ)
    a('s_cselect_b64 s[8:9], s[6:7], s[8:9]')
    a('s_cselect_b64 s[10:11], s[6:7], s[10:11]')
    a('s_lshl_b32 s%d, s%d, 9' % (T0, RB))
    srd(a, S_G, 8, 's%d' % T0)
    srd(a, S_U, 10, 's%d' % T0)
    srd(a, S_KV, 6, 512 * 3072)
    srd(a, S_WS, 14, WS_SIZE)
    srd(a, S_GW, 12, 1024)

    def dma(stage):
        sb = (stage % 3) * SLOT
        r = []
        for half in range(2):
            r.append('s_add_u32 m0, s%d, %d' % (XL, sb + half * 4096))
            r.append('s_nop 0')
            for q in range(4):
                r.append('buffer_load_dwordx4 v%d, %s, s%d offen offset:%d lds' % (VX + half * 4 + q, sr(S_X, 4), SX, q * 1024))
        r.append('s_add_u32 m0, s%d, %d' % (WL, sb))
        r.append('s_add_u32 s%d, s%d, 128' % (SX, SX))
        for q in range(2):
            r.append('buffer_load_dwordx4 v%d, %s, s%d offen offset:%d lds' % (VG + q, sr(S_G, 4), SG, q * 1024))
        r.append('s_add_u32 m0, s%d, %d' % (WL, sb + 2048))
        r.append('s_nop 0')
        for q in range(2):
            r.append('buffer_load_dwordx4 v%d, %s, s%d offen offset:%d lds' % (VU + q, sr(S_U, 4), SG, q * 1024))
        r.append('s_add_u32 m0, s%d, %d' % (WL, sb + 4096))
        r.append('s_add_u32 s%d, s%d, s%d' % (SG, SG, T3))
        r.append('buffer_load_dwordx4 v%d, %s, s%d offen lds' % (VKV, sr(S_KV, 4), SKV))
        r.append('s_add_u32 s%d, s%d, %d' % (SKV, SKV, 64 * 3072))
        return r

    for i in dma(0):
        a(i)
    a('s_lshl_b32 s%d, s%d, 8' % (T0, RT))
    a('s_lshl_b32 s%d, s%d, 3' % (T1, CT))
    a('s_add_u32 s%d, s%d, s%d' % (T0, T0, T1))
    a('s_lshl_b32 s%d, s%d, 1' % (T1, WV))
    a('s_add_u32 s%d, s%d, s%d' % (T0, T0, T1))
    a('v_add_u32 v88, s%d, v3' % T0)
    a('v_lshlrev_b32 v89, 5, v2')
    a('v_lshl_add_u32 v90, v88, 10, v89')
    a('buffer_load_dwordx4 %s, v90, %s, 0 offen' % (vr(GX, 4), sr(S_X, 4)))
    a('buffer_load_dwordx4 %s, v90, %s, 0 offen offset:16' % (vr(GX + 4, 4), sr(S_X, 4)))
    a('buffer_load_dwordx4 %s, v89, %s, 0 offen' % (vr(GWr, 4), sr(S_GW, 4)))
    a('buffer_load_dwordx4 %s, v89, %s, 0 offen offset:16' % (vr(GWr + 4, 4), sr(S_GW, 4)))
    for i in dma(1):
        a(i)
    for i in dma(2):
        a(i)
    for r in range(32):
        a('v_mov_b32 v%d, 0' % (BACC + r))
    a('s_lshl_b32 s%d, s%d, 13' % (T0, WV))
    a('v_lshl_add_u32 v6, v2, 7, s%d' % T0)
    a('v_bfe_u32 v7, v2, 1, 3')
    a('v_xor_b32 v7, v7, v3')
    for t in range(4):
        a('v_xor_b32 v16, %d, v7' % (2 * t))
        a('v_lshl_add_u32 v%d, v16, 4, v6' % (BXA0 + t))
    a('v_lshrrev_b32 v6, 2, v4')
    a('v_lshl_add_u32 v6, v3, 3, v6')
    a('v_lshlrev_b32 v6, 6, v6')
    a('v_lshl_add_u32 v6, v5, 5, v6')
    a('v_and_b32 v7, 3, v4')
    a('v_lshl_add_u32 v6, v7, 3, v6')
    a('v_add_u32 v%d, 0x%x, v6' % (BKA0, WREG + 4096))
    for t in range(5):
        a('v_mov_b32 v%d, v%d' % (BXA + t, BXA0 + t))

    def b_reads(st, t):
        return ['ds_read_b128 %s, v%d' % (vr(st, 4), BXA + t),
                'ds_read_b64_tr_b16 %s, v%d offset:%d' % (vr(st + 8, 2), BKA, t * TG),
                'ds_read_b64_tr_b16 %s, v%d offset:%d' % (vr(st + 10, 2), BKA, t * TG + 256),
                'ds_read_b128 %s, v%d offset:4096' % (vr(st + 4, 4), BXA + t)]

    a('s_waitcnt vmcnt(26)')
    a('s_barrier')
    for r in b_reads(BSET[0], 0):
        a(r)
    P = 40
    a('v_mov_b32 v91, 0')
    for j in range(8):
        a('v_lshlrev_b32 v%d, 16, v%d' % (P, GX + j))
        a('v_and_b32 v%d, 0xffff0000, v%d' % (P + 1, GX + j))
        a('v_lshlrev_b32 v%d, 16, v%d' % (P + 2, GWr + j))
        a('v_and_b32 v%d, 0xffff0000, v%d' % (P + 3, GWr + j))
        a('v_mul_f32 v%d, v%d, v%d' % (P, P, P + 2))
        a('v_mul_f32 v%d, v%d, v%d' % (P + 1, P + 1, P + 3))
        a('v_cvt_pk_bf16_f32 v%d, v%d, v%d' % (P, P, P + 1))
        a('v_and_b32 v%d, 0xffff0000, v%d' % (P + 1, P))
        a('v_lshlrev_b32 v%d, 16, v%d' % (P, P))
        a('v_add_f32 v91, v91, v%d' % (P + 1))
        a('v_add_f32 v91, v91, v%d' % P)
    for sh in (8, 4, 2, 1):
        a('s_nop 1')
        a('v_add_f32_dpp v91, v91, v91 row_ror:%d row_mask:0xf bank_mask:0xf' % sh)
    a('v_mov_b32 v92, v91')
    a('s_nop 1')
    a('v_permlane16_swap_b32 v91, v92')
    a('s_nop 1')
    a('v_add_f32 v91, v91, v92')
    a('v_cvt_pk_bf16_f32 v91, v91, v91')
    a('v_lshlrev_b32 v91, 16, v91')
    a('v_mul_f32 v91, 0x%x, v91' % NLOG2E)
    a('v_exp_f32 v91, v91')
    a('s_nop 0')
    a('v_add_f32 v91, 1.0, v91')
    a('v_rcp_f32 v91, v91')
    a('s_nop 0')
    a('v_cvt_pk_bf16_f32 v91, v91, v91')
    a('v_lshlrev_b32 v91, 16, v91')
    a('v_lshlrev_b32 v88, 2, v88')
    a('s_mov_b32 s%d, 0x%x' % (T0, WS_G))
    a('buffer_store_dword v91, v88, %s, s%d offen' % (sr(S_WS, 4), T0))

    for st in range(8):
        for t in range(4):
            cur = BSET[t & 1]
            nxt = BSET[(t + 1) & 1]
            a('s_waitcnt lgkmcnt(0)')
            extra = []
            if t == 3:
                if st <= 5:
                    a('s_waitcnt vmcnt(13)')
                elif st == 6:
                    a('s_waitcnt vmcnt(0)')
                a('s_barrier')
                if st + 3 < 8:
                    extra = dma(st + 3)
                if st < 7:
                    nb = ((st + 1) % 3) * SLOT
                    for j in range(5):
                        a('v_add_u32 v%d, 0x%x, v%d' % (BXA + j, nb, BXA0 + j))
            if not (st == 7 and t == 3):
                for r in b_reads(nxt, (t + 1) & 3):
                    a(r)
            mfma(a, BACC, cur, cur + 8)
            mfma(a, BACC + 16, cur + 4, cur + 8)
            for i in extra:
                a(i)
    a('s_mov_b32 s%d, 0x0000ffff' % KMASK)
    a('s_mov_b32 s%d, 0x0000ffff' % (KMASK + 1))
    a('s_nop 7')
    a('s_nop 3')
    a('s_mov_b64 exec, %s' % sr(KMASK, 2))
    for blk in range(2):
        phi_pairs(a, [BACC + blk * 16 + 2 * j for j in range(8)], 40, L2E, EP)
    a('s_mov_b64 exec, -1')
    TT, TP = 16, 32
    for j in range(16):
        a('v_cvt_pk_bf16_f32 v%d, v%d, v%d' % (TT + j, BACC + 2 * j, BACC + 2 * j + 1))
    a('v_mov_b32 v6, 0x%x' % ONES)
    for j in range(16):
        a('v_cndmask_b32 v%d, v%d, v6, %s' % (TP + j, TT + j, sr(KMASK, 2)))
    a('s_nop 1')
    KD = 160
    for q in range(4):
        mfma(a, KD, TT + 4 * q, TP + 4 * q, '0' if q == 0 else None)
    a('v_lshlrev_b32 v6, 4, v1')
    a('s_cmp_eq_u32 s%d, 0' % WV)
    a('s_cbranch_scc1 k1_B_red')
    a('s_sub_u32 s%d, s%d, 1' % (T0, WV))
    a('s_lshl_b32 s%d, s%d, 11' % (T0, T0))
    a('v_add_u32 v7, s%d, v6' % T0)
    a('s_nop 7')
    a('ds_write_b128 v7, %s' % vr(KD, 4))
    a('ds_write_b128 v7, %s offset:1024' % vr(KD + 4, 4))
    a('s_waitcnt lgkmcnt(0)')
    a('s_barrier')
    a('s_endpgm')
    a.label('k1_B_red')
    a('s_barrier')
    for w in range(3):
        a('ds_read_b128 %s, v6 offset:%d' % (vr(16 + 8 * w, 4), w * 2048))
        a('ds_read_b128 %s, v6 offset:%d' % (vr(20 + 8 * w, 4), w * 2048 + 1024))
    a('s_lshl_b32 s%d, s%d, 3' % (T0, CT))
    a('s_add_u32 s%d, s%d, s%d' % (T0, T0, RT))
    a('s_lshl_b32 s%d, s%d, 11' % (T0, T0))
    a('s_add_u32 s%d, s%d, 0x%x' % (T0, T0, WS_KVP))
    a('s_nop 4')
    a('s_waitcnt lgkmcnt(0)')
    for w in range(3):
        for j in range(4):
            a('v_pk_add_f32 %s, %s, %s' % (vr(KD + 2 * j, 2), vr(KD + 2 * j, 2), vr(16 + 8 * w + 2 * j, 2)))
    a('buffer_store_dwordx4 %s, v6, %s, s%d offen' % (vr(KD, 4), sr(S_WS, 4), T0))
    a('buffer_store_dwordx4 %s, v6, %s, s%d offen offset:1024' % (vr(KD + 4, 4), sr(S_WS, 4), T0))
    a.label('k1_end')
    a('s_endpgm')


RING = 12
K2_KVZ = 4 * RING * 2048
K2_LDS = K2_KVZ + 32768


def gen_k2(a):
    K = 'k2_kernel'
    a.raw('.globl %s' % K)
    a.raw('.p2align 8')
    a.raw('.type %s,@function' % K)
    a.label(K)
    S_WD, S_WO, S_OUT, S_WS, S_DBG = 16, 20, 24, 28, 32
    RT, CT, WV = 40, 41, 42
    T0, T1, T2, T3 = 50, 51, 52, 53
    SA, SW, LB = 54, 55, 56
    a('s_cmp_ge_u32 s2, 256')
    a('s_cbranch_scc1 k2_end')
    a('s_load_dwordx2 s[4:5], s[0:1], 16')
    a('s_load_dwordx2 s[6:7], s[0:1], 48')
    a('s_load_dwordx4 s[8:11], s[0:1], 64')
    a('s_load_dwordx2 s[12:13], s[0:1], 80')
    a('v_lshrrev_b32 v2, 6, v0')
    a('v_and_b32 v1, 63, v0')
    a('v_readfirstlane_b32 s%d, v2' % WV)
    a('s_and_b32 s%d, s2, 7' % T0)
    a('s_lshr_b32 s%d, s2, 3' % T1)
    a('s_lshr_b32 s%d, s%d, 1' % (T2, T0))
    a('s_lshl_b32 s%d, s%d, 3' % (T2, T2))
    a('s_and_b32 s%d, s%d, 7' % (T3, T1))
    a('s_add_u32 s%d, s%d, s%d' % (RT, T2, T3))
    a('s_and_b32 s%d, s%d, 1' % (T2, T0))
    a('s_lshl_b32 s%d, s%d, 2' % (T2, T2))
    a('s_lshr_b32 s%d, s%d, 3' % (T3, T1))
    a('s_add_u32 s%d, s%d, s%d' % (CT, T2, T3))
    a('v_lshlrev_b32 v6, 4, v1')
    a('s_cmp_eq_u32 s%d, 4' % WV)
    a('s_cbranch_scc1 k2_helper')

    VA, VW, TA, GV, G1 = 8, 10, 12, 14, 16
    KA = 18
    WSET = [24, 32]
    KVS = [40, 44]
    ND = 48
    AR = 80
    ACC = 192
    assert AR + RING * 8 <= ACC
    a('v_and_b32 v2, 31, v1')
    a('v_lshrrev_b32 v3, 5, v1')
    a('v_and_b32 v4, 15, v1')
    a('v_bfe_u32 v5, v1, 4, 1')
    a('s_mul_i32 s%d, s%d, %d' % (T0, RT, 2 * 144 * 1024))
    a('v_add_u32 v%d, s%d, v6' % (VA, T0))
    a('v_add_u32 v%d, 0x%x, v%d' % (VA + 1, 144 * 1024, VA))
    a('v_lshrrev_b32 v7, 3, v1')
    a('s_lshl_b32 s%d, s%d, 7' % (T0, CT))
    a('v_lshl_add_u32 v7, v7, 10, s%d' % T0)
    a('v_bfe_u32 v20, v1, 2, 1')
    a('v_xor_b32 v20, v20, v5')
    a('v_lshl_add_u32 v7, v20, 6, v7')
    a('v_and_b32 v20, 3, v1')
    a('v_lshl_add_u32 v%d, v20, 4, v7' % VW)
    a('v_add_u32 v%d, %d, v%d' % (VW + 1, 8192 - 1024, VW))
    a('s_mul_i32 s%d, s%d, %d' % (LB, WV, RING * 2048))
    a('s_mul_i32 s%d, s%d, %d' % (SA, WV, 28 * 1024))
    a('s_mul_i32 s%d, s%d, %d' % (SW, WV, 28 * 16384))
    a('s_lshl_b32 s%d, s%d, 8' % (T0, RT))
    a('s_add_u32 s%d, s%d, 0x%x' % (T0, T0, WS_G))
    a('v_lshlrev_b32 v21, 2, v2')
    a('s_waitcnt lgkmcnt(0)')
    srd(a, S_WS, 12, WS_SIZE)
    srd(a, S_WD, 6, 1792 * 1024)
    srd(a, S_WO, 4, 512 * 1024)
    srd(a, S_OUT, 8, 2048 * 1024)

    NST = 36

    def loads(t):
        r = []
        sl = t % RING
        if t == 28:
            r.append('s_lshl_b32 s%d, s%d, 13' % (SA, WV))
            r.append('s_add_u32 s%d, s%d, %d' % (SA, SA, 112 * 1024))
            r.append('s_lshl_b32 s%d, s%d, 17' % (SW, WV))
        r.append('s_add_u32 m0, s%d, %d' % (LB, sl * 2048))
        wsrd = S_WD if t < 28 else S_WO
        for rb in range(2):
            r.append('buffer_load_dwordx4 %s, v%d, %s, s%d offen offset:%d' % (
                vr(AR + sl * 8 + rb * 4, 4), VA + rb, sr(S_WS, 4), SA, (t & 3) * 1024))
        for j in range(2):
            r.append('buffer_load_dwordx4 v%d, %s, s%d offen offset:%d lds' % (VW + j, sr(wsrd, 4), SW, j * 1024))
        r.append('s_add_u32 s%d, s%d, 16384' % (SW, SW))
        if (t & 3) == 3:
            r.append('s_add_u32 s%d, s%d, 4096' % (SA, SA))
        return r

    for t in range(RING):
        for i in loads(t):
            a(i)
        if t == 0:
            a('buffer_load_dword v%d, v21, %s, s%d offen' % (GV, sr(S_WS, 4), T0))
            a('buffer_load_dword v%d, v21, %s, s%d offen offset:128' % (GV + 1, sr(S_WS, 4), T0))
    a('v_lshrrev_b32 v7, 2, v4')
    a('v_lshl_add_u32 v7, v3, 2, v7')
    a('v_lshl_add_u32 v7, v7, 7, s%d' % LB)
    a('v_lshl_add_u32 v7, v5, 5, v7')
    a('v_and_b32 v20, 3, v4')
    a('v_lshl_add_u32 v7, v20, 3, v7')
    a('v_lshrrev_b32 v20, 3, v4')
    a('v_lshl_add_u32 v%d, v20, 6, v7' % TA)
    a('v_xor_b32 v20, 1, v20')
    a('v_lshl_add_u32 v%d, v20, 6, v7' % (TA + 1))
    a('s_lshl_b32 s%d, s%d, 13' % (T1, WV))
    a('s_add_u32 s%d, s%d, %d' % (T1, T1, K2_KVZ))
    a('v_add_u32 v%d, s%d, v6' % (KA, T1))
    for r in range(64):
        a('v_mov_b32 v%d, 0' % (ACC + r))

    def treads(t):
        sl = t % RING
        st = WSET[t & 1]
        r = []
        for cb in range(2):
            for q in range(2):
                r.append('ds_read_b64_tr_b16 %s, v%d offset:%d' % (vr(st + cb * 4 + q * 2, 2), TA + cb, sl * 2048 + q * 1024))
        return r

    def issued_after(t_need, t_issued_last):
        return max(0, t_issued_last - t_need) * 4

    a('s_waitcnt vmcnt(%d)' % issued_after(0, RING - 1))
    for r in treads(0):
        a(r)
    for rb in range(2):
        a('v_sub_f32 v%d, 1.0, v%d' % (G1 + rb, GV + rb))
    for rb in range(2):
        a('v_cvt_pk_bf16_f32 v%d, v%d, v%d' % (G1 + rb, G1 + rb, G1 + rb))
    for rb in range(2):
        a('v_lshlrev_b32 v%d, 16, v%d' % (G1 + rb, G1 + rb))

    def make_o(t):
        sl = t % RING
        for rb in range(2):
            nd = ND + rb * 16
            a('v_add_f32 v%d, 0x%x, v%d' % (nd, EPS, nd))
        for rb in range(2):
            nd = ND + rb * 16
            a('v_rcp_f32 v%d, v%d' % (nd, nd))
        a('s_nop 0')
        for rb in range(2):
            nd = ND + rb * 16
            a('v_mul_f32 v%d, v%d, v%d' % (nd, nd, GV + rb))
        for rb in range(2):
            nd = ND + rb * 16
            for j in range(4):
                a('v_pk_mul_f32 %s, %s, %s op_sel_hi:[1,0]' % (vr(nd + 8 + 2 * j, 2), vr(nd + 8 + 2 * j, 2), vr(nd, 2)))
            for j in range(4):
                a('v_cvt_pk_bf16_f32 v%d, v%d, v%d' % (AR + sl * 8 + rb * 4 + j, nd + 8 + 2 * j, nd + 9 + 2 * j))

    last_issued = RING - 1
    for t in range(NST):
        sl = t % RING
        if t + 1 < NST:
            a('s_waitcnt vmcnt(%d) lgkmcnt(0)' % issued_after(t + 1, last_issued))
        else:
            a('s_waitcnt lgkmcnt(0)')
        if t == 26:
            a('s_barrier')
        if t + 1 < NST:
            for r in treads(t + 1):
                a(r)
        if 28 <= t + 2 < NST:
            a('ds_read_b128 %s, v%d offset:%d' % (vr(KVS[t & 1], 4), KA, (t + 2 - 28) * 1024))
        if t == 28:
            a('s_nop 7')
            a('s_nop 3')
            for cb in range(2):
                for rb in range(2):
                    base = ACC + (cb * 2 + rb) * 16
                    for j in range(16):
                        a('v_mul_f32 v%d, v%d, v%d' % (base + j, base + j, G1 + rb))
            a('s_nop 1')
        att = 28 <= t + 1 < NST
        if att:
            sl1 = (t + 1) % RING
            for rb in range(2):
                mfma(a, ND + rb * 16, KVS[(t + 1) & 1], AR + sl1 * 8 + rb * 4, '0')
        for cb in range(2):
            for rb in range(2):
                mfma(a, ACC + (cb * 2 + rb) * 16, WSET[t & 1] + cb * 4, AR + sl * 8 + rb * 4)
        if t + RING < NST:
            for i in loads(t + RING):
                a(i)
            last_issued = t + RING
        if att:
            a('s_nop 7')
            make_o(t + 1)
            a('s_nop 1') if False else None
    a('v_add_u32 v7, s%d, v6' % LB)
    a('s_nop 7')
    a('s_nop 3')
    for b in range(4):
        a('s_cmp_eq_u32 s%d, %d' % (WV, b))
        a('s_cbranch_scc1 k2_skipw%d' % b)
        for q in range(4):
            a('ds_write_b128 v7, %s offset:%d' % (vr(ACC + b * 16 + q * 4, 4), b * 4096 + q * 1024))
        a('s_branch k2_nextw%d' % b)
        a.label('k2_skipw%d' % b)
        for j in range(16):
            a('v_mov_b32 v%d, v%d' % (ND + j, ACC + b * 16 + j))
        a.label('k2_nextw%d' % b)
    a('s_waitcnt lgkmcnt(0)')
    a('s_barrier')
    a('s_lshl_b32 s%d, s%d, 12' % (T0, WV))
    for k in range(1, 4):
        a('s_add_u32 s%d, s%d, %d' % (T1, WV, k))
        a('s_and_b32 s%d, s%d, 3' % (T1, T1))
        a('s_mul_i32 s%d, s%d, %d' % (T1, T1, RING * 2048))
        a('s_add_u32 s%d, s%d, s%d' % (T1, T1, T0))
        a('v_add_u32 v7, s%d, v6' % T1)
        for q in range(4):
            a('ds_read_b128 %s, v7 offset:%d' % (vr(AR + (k - 1) * 16 + q * 4, 4), q * 1024))
    a('s_and_b32 s%d, s%d, 1' % (T0, WV))
    a('s_lshr_b32 s%d, s%d, 1' % (T1, WV))
    a('s_lshl_b32 s%d, s%d, 1' % (T2, RT))
    a('s_add_u32 s%d, s%d, s%d' % (T2, T2, T0))
    a('s_lshl_b32 s%d, s%d, 15' % (T2, T2))
    a('s_lshl_b32 s%d, s%d, 1' % (T3, CT))
    a('s_add_u32 s%d, s%d, s%d' % (T3, T3, T1))
    a('s_lshl_b32 s%d, s%d, 6' % (T3, T3))
    a('s_add_u32 s%d, s%d, s%d' % (T2, T2, T3))
    a('v_lshlrev_b32 v7, 10, v2')
    a('v_lshl_add_u32 v7, v3, 4, v7')
    for k in range(3):
        a('s_waitcnt lgkmcnt(%d)' % (8 - 4 * k))
        for j in range(8):
            a('v_pk_add_f32 %s, %s, %s' % (vr(ND + 2 * j, 2), vr(ND + 2 * j, 2), vr(AR + k * 16 + 2 * j, 2)))
    for j in range(8):
        a('v_cvt_pk_bf16_f32 v%d, v%d, v%d' % (24 + j, ND + 2 * j, ND + 2 * j + 1))
    a('s_nop 1')
    a('v_permlane32_swap_b32 v24, v26')
    a('v_permlane32_swap_b32 v25, v27')
    a('v_permlane32_swap_b32 v28, v30')
    a('v_permlane32_swap_b32 v29, v31')
    a('s_nop 1')
    a('buffer_store_dwordx4 v[24:27], v7, %s, s%d offen' % (sr(S_OUT, 4), T2))
    a('buffer_store_dwordx4 v[28:31], v7, %s, s%d offen offset:32' % (sr(S_OUT, 4), T2))
    a('s_endpgm')

    a.label('k2_helper')
    a('s_waitcnt lgkmcnt(0)')
    srd(a, S_WS, 12, WS_SIZE)
    srd(a, S_DBG, 10, 256)
    a('s_cmp_ge_u32 s2, 32')
    a('s_cbranch_scc1 k2_poll0')
    a('s_lshl_b32 s%d, s2, 14' % T0)
    a('s_add_u32 s%d, s%d, 0x%x' % (T0, T0, WS_KVP))
    for p in range(8):
        if p and p % 2 == 0:
            a('s_add_u32 s%d, s%d, 4096' % (T0, T0))
        for q in range(2):
            a('buffer_load_dwordx4 %s, v6, %s, s%d offen offset:%d' % (
                vr(16 + p * 8 + q * 4, 4), sr(S_WS, 4), T0, (p & 1) * 2048 + q * 1024))
    for p in range(1, 8):
        a('s_waitcnt vmcnt(%d)' % (14 - 2 * p))
        for j in range(4):
            a('v_pk_add_f32 %s, %s, %s' % (vr(16 + 2 * j, 2), vr(16 + 2 * j, 2), vr(16 + p * 8 + 2 * j, 2)))
    for j in range(4):
        a('v_cvt_pk_bf16_f32 v%d, v%d, v%d' % (8 + j, 16 + 2 * j, 17 + 2 * j))
    a('s_lshl_b32 s%d, s2, 10' % T0)
    a('s_add_u32 s%d, s%d, 0x%x' % (T0, T0, WS_KVZ))
    a('buffer_store_dwordx4 v[8:11], v6, %s, s%d offen sc1' % (sr(S_WS, 4), T0))
    a('s_waitcnt vmcnt(0)')
    a('v_mov_b32 v7, 1')
    a('s_mov_b64 exec, 1')
    a('buffer_atomic_add v7, off, %s, 0 sc1' % sr(S_DBG, 4))
    a('s_mov_b64 exec, -1')
    a.label('k2_poll0')
    a('s_mov_b32 s%d, 0' % T1)
    a.label('k2_poll')
    a('buffer_load_dword v7, off, %s, 0 sc1' % sr(S_DBG, 4))
    a('s_waitcnt vmcnt(0)')
    a('v_readfirstlane_b32 s%d, v7' % T0)
    a('s_cmp_ge_u32 s%d, 32' % T0)
    a('s_cbranch_scc1 k2_got')
    a('s_sleep 8')
    a('s_add_u32 s%d, s%d, 1' % (T1, T1))
    a('s_cmp_lt_u32 s%d, 0x40000' % T1)
    a('s_cbranch_scc1 k2_poll')
    a.label('k2_got')
    a('s_mov_b32 s%d, 0x%x' % (T0, WS_KVZ))
    for hd in range(32):
        if hd and hd % 4 == 0:
            a('s_add_u32 s%d, s%d, 4096' % (T0, T0))
        a('buffer_load_dwordx4 %s, v6, %s, s%d offen offset:%d sc1' % (vr(16 + hd * 4, 4), sr(S_WS, 4), T0, (hd & 3) * 1024))
    a('v_add_u32 v7, 0x%x, v6' % K2_KVZ)
    for hd in range(32):
        a('s_waitcnt vmcnt(%d)' % (31 - hd))
        a('ds_write_b128 v7, %s offset:%d' % (vr(16 + hd * 4, 4), hd * 1024))
    a('s_waitcnt lgkmcnt(0)')
    a('s_barrier')
    a.label('k2_end')
    a('s_endpgm')


def kd(a, name, vgpr, sgpr):
    a.raw('.p2align 6')
    a.raw('.amdhsa_kernel %s' % name)
    a.raw('  .amdhsa_next_free_vgpr %d' % vgpr)
    a.raw('  .amdhsa_next_free_sgpr %d' % sgpr)
    a.raw('  .amdhsa_accum_offset %d' % ((vgpr + 3) // 4 * 4))
    a.raw('  .amdhsa_group_segment_fixed_size 0')
    a.raw('  .amdhsa_kernarg_size 88')
    a.raw('  .amdhsa_user_sgpr_count 2')
    a.raw('  .amdhsa_user_sgpr_kernarg_segment_ptr 1')
    a.raw('  .amdhsa_system_sgpr_workgroup_id_x 1')
    a.raw('.end_amdhsa_kernel')


def main(out, which='12'):
    a = Asm()
    hdr = open('cdna_kernels/%s.s.ref' % NAME).read().split('\n')
    for line in hdr:
        if line.startswith(';') and '@launch' not in line and 'Override launch' not in line and 'grid=ceil' not in line:
            a.raw(line)
    if '1' in which:
        a.raw('; @launch kernel=k1_kernel grid=(256,1,1) block=(512,1,1) lds=%d' % (3 * SLOT))
    if '2' in which:
        a.raw('; @launch kernel=k2_kernel grid=(256,1,1) block=(320,1,1) lds=%d' % K2_LDS)
    a.raw('.amdgcn_target "amdgcn-amd-amdhsa--gfx950"')
    a.raw('.text')
    gen_k1(a)
    gen_k2(a)
    a.raw('.section .rodata,"a"')
    kd(a, 'k1_kernel', 256, 72)
    kd(a, 'k2_kernel', 256, 72)
    open(out, 'w').write(a.text())


if __name__ == '__main__':
    main(sys.argv[1], sys.argv[2] if len(sys.argv) > 2 else '12')
```

```python
import re

TRANS = ('v_exp_f32', 'v_log_f32', 'v_rcp_f32', 'v_rsq_f32', 'v_sqrt_f32', 'v_sin_f32', 'v_cos_f32')


def vr(b, n=1):
    return 'v%d' % b if n == 1 else 'v[%d:%d]' % (b, b + n - 1)


def sr(b, n=1):
    return 's%d' % b if n == 1 else 's[%d:%d]' % (b, b + n - 1)


def regs_of(tok):
    tok = tok.strip().lstrip('-').strip('|')
    m = re.fullmatch(r'([vs])(\d+)', tok)
    if m:
        return {(m.group(1), int(m.group(2)))}
    m = re.fullmatch(r'([vs])\[(\d+):(\d+)\]', tok)
    if m:
        return {(m.group(1), i) for i in range(int(m.group(2)), int(m.group(3)) + 1)}
    if tok == 'vcc':
        return {('s', 106), ('s', 107)}
    if tok == 'vcc_lo':
        return {('s', 106)}
    if tok == 'vcc_hi':
        return {('s', 107)}
    if tok == 'm0':
        return {('s', 124)}
    if tok == 'exec':
        return {('s', 126), ('s', 127)}
    return set()


class Ins:
    def __init__(self, text):
        self.text = text
        t = text.split(';')[0].strip()
        p = t.split(None, 1)
        self.mn = p[0]
        rest = p[1] if len(p) > 1 else ''
        ops = [o.strip() for o in rest.split(',')] if rest else []
        self.mods = ''
        if ops:
            m = re.split(r'\s+(?=[a-z_0-9]+:|offen|lds|sc0|sc1|nt\b|clamp|row_|quad_perm|bound_ctrl)', rest, 1)
            main = m[0]
            self.mods = m[1] if len(m) > 1 else ''
            ops = [o.strip() for o in main.split(',')]
        self.ops = ops
        mn = self.mn
        self.kind = 'other'
        self.w = set(); self.r = set()
        self.A = self.B = self.C = set()
        self.data = set()
        self.ws = 1
        R = [regs_of(o) for o in ops]
        if mn == 's_nop':
            self.ws = int(ops[0], 0) + 1
        elif mn.startswith('v_mfma'):
            self.kind = 'mfma'
            self.w = R[0]; self.A = R[1]; self.B = R[2]; self.C = R[3]
            self.r = R[1] | R[2] | R[3]
            self.passes = 8 if '32x32' in mn else 4
        elif mn.startswith('v_'):
            self.kind = 'valu'
            if mn.startswith('v_nop'):
                pass
            elif 'swap' in mn:
                self.w = R[0] | R[1]; self.r = R[0] | R[1]
            else:
                self.w = R[0]
                for x in R[1:]:
                    self.r |= x
                if mn.startswith(('v_writelane', 'v_fmac', 'v_dot2c', 'v_mac')) or 'dpp' in mn or 'row_' in self.mods or 'quad_perm' in self.mods:
                    self.r |= R[0]
                if mn.startswith('v_cndmask') and len(ops) == 3:
                    self.r |= regs_of('vcc')
            self.dpp = 'dpp' in mn or 'row_' in self.mods or 'quad_perm' in self.mods
        elif mn.startswith('ds_'):
            self.kind = 'ds'
            if mn.startswith('ds_read'):
                self.w = R[0]
                for x in R[1:]:
                    self.r |= x
            else:
                for x in R:
                    self.r |= x
            if 'addtid' in mn:
                self.r |= regs_of('m0')
        elif mn.startswith(('buffer_', 'global_')):
            self.kind = 'vmem'
            self.lds = bool(re.search(r'\blds\b', self.mods))
            if 'load' in mn and not self.lds:
                self.w = R[0]
                for x in R[1:]:
                    self.r |= x
            else:
                for x in R:
                    self.r |= x
                if self.lds:
                    self.r |= regs_of('m0')
                elif 'x4' in mn or 'x3' in mn:
                    self.data = R[0] if mn.startswith('buffer') else R[1]
        elif mn.startswith('s_'):
            self.kind = 'salu'
            if mn.startswith(('s_cmp', 's_cbranch', 's_branch', 's_waitcnt', 's_barrier', 's_sleep', 's_setprio', 's_endpgm', 's_bitcmp')):
                for x in R:
                    self.r |= x
            else:
                if R:
                    self.w = R[0]
                for x in R[1:]:
                    self.r |= x

    def need(self, c):
        p = self
        n = 0
        vw = {x for x in p.w if x[0] == 'v'}
        sw = {x for x in p.w if x[0] == 's'}
        if p.kind == 'mfma':
            d = 8 if p.passes == 4 else 12
            if c.kind == 'mfma':
                if vw & (c.A | c.B):
                    n = max(n, d)
                if vw & c.C and not (vw == c.C and c.passes == p.passes):
                    n = max(n, d - 2)
                if vw & c.w and not (vw == c.C and c.passes == p.passes):
                    n = max(n, d - 2)
            elif c.kind in ('valu', 'ds', 'vmem'):
                if vw & (c.r | c.w):
                    n = max(n, d)
            if c.kind == 'valu' and p.C & c.w:
                n = max(n, p.passes - 1)
        if p.kind == 'valu':
            if c.kind == 'mfma' and vw & c.r:
                n = max(n, 3 if p.mn.startswith('v_dot') else 2)
            if c.kind == 'valu':
                if p.mn.startswith(TRANS) and vw & c.r:
                    n = max(n, 1)
                if c.mn.startswith(('v_readlane', 'v_readfirstlane')) and vw & c.r:
                    n = max(n, 1)
                if (c.dpp or 'permlane' in c.mn) and vw & c.r:
                    n = max(n, 2)
                if sw & c.r:
                    n = max(n, 4 if c.mn.startswith(('v_readlane', 'v_writelane')) else 2)
                if p.mn.startswith('v_dot') and vw & (c.r | c.w):
                    same_c = c.mn == p.mn and not (vw & (regs_of(c.ops[1]) | regs_of(c.ops[2])))
                    if not same_c:
                        n = max(n, 3)
            if c.kind in ('vmem', 'ds') and p.mn.startswith(('v_dot',) + TRANS) and vw & c.r:
                n = max(n, 3)
            if c.kind == 'vmem' and sw & c.r:
                n = max(n, 5)
        if p.kind == 'vmem' and p.data & c.w:
            n = max(n, 2)
        if p.kind == 'salu' and ('s', 124) in p.w and ('s', 124) in c.r and c.kind in ('vmem', 'ds'):
            n = max(n, 1)
        return n


class Asm:
    def __init__(self):
        self.l = []

    def __call__(self, s):
        if isinstance(s, (list, tuple)):
            for x in s:
                self(x)
        else:
            self.l.append('    ' + s)

    def label(self, s):
        self.l.append(s + ':')

    def c(self, s):
        self.l.append('    ; ' + s)

    def raw(self, s):
        self.l.append(s)

    def text(self):
        return '\n'.join(self.l) + '\n'

    def fix(self, verbose=False):
        total = 0
        while True:
            items = []
            labels = {}
            for i, ln in enumerate(self.l):
                s = ln.strip()
                if not s or s.startswith((';', '.')):
                    continue
                if s.endswith(':'):
                    labels[s[:-1]] = len(items)
                    continue
                if not ln.startswith('    '):
                    continue
                items.append((i, Ins(s)))
            n = len(items)
            preds = [[] for _ in range(n + 1)]
            for k, (i, ins) in enumerate(items):
                if ins.mn == 's_endpgm':
                    continue
                if ins.mn.startswith(('s_branch', 's_cbranch')):
                    preds[labels[ins.ops[0]]].append(k)
                    if ins.mn == 's_branch':
                        continue
                preds[k + 1].append(k)
            fix_at = None
            for k, (i, c) in enumerate(items):
                if c.kind in ('other', 'salu'):
                    continue
                worst = 0
                stack = [(p, 0) for p in preds[k]]
                seen = set()
                while stack:
                    p, dist = stack.pop()
                    if (p, dist) in seen:
                        continue
                    seen.add((p, dist))
                    pi = items[p][1]
                    nd = pi.need(c)
                    if nd > dist:
                        if nd - dist > worst:
                            worst = nd - dist
                            why = pi.text
                    d2 = dist + pi.ws
                    if d2 < 12:
                        for q in preds[p]:
                            stack.append((q, d2))
                if worst:
                    fix_at = (i, worst, why, c.text)
                    self.l.insert(i, '    s_nop %d' % (worst - 1))
                    total += 1
                    if verbose:
                        print('pad %d: [%s] -> [%s]' % (worst, why, c.text))
                    break
            if fix_at is None:
                break
        return total


class Cnt:
    def __init__(self, a, name, maxv):
        self.a = a; self.name = name; self.maxv = maxv
        self.ops = []
        self.done = 0

    def op(self, text, tag=None):
        self.a(text)
        self.ops.append(tag)

    def count_after(self, tag):
        idx = max(i for i, t in enumerate(self.ops) if t == tag)
        return idx, len(self.ops) - 1 - idx

    def wait(self, tag, emit=True):
        idx, n = self.count_after(tag)
        if idx < self.done:
            return None
        n = min(n, self.maxv)
        self.done = len(self.ops) - n
        s = 's_waitcnt %s(%d)' % (self.name, n)
        if emit:
            self.a(s)
        return s

    def all(self):
        self.a('s_waitcnt %s(0)' % self.name)
        self.done = len(self.ops)
```

```python
import sys, os
from asmlib import Asm, Cnt, vr, sr

NAME = 'gated_mix__linear_attn_block__glu_gated_bilinear__prompt'


def env(k, d):
    return type(d)(os.environ.get(k, d))


DIAG = env('DIAG', 0)
SCHED = env('SCHED', 'b')
PRE = env('PRE', 8)
P1ONLY = env('P1ONLY', 0)

WS_A2 = 0
WS_BLK = 0x00A00000
WS_G = 0x00A10000
WS_STAMP = 0x00C00000
WS_SIZE = 0x01000000
O_Z, O_KF, O_F = 1024, 1152, 1280

LOG2E = 0x3FB8AA3B
NLOG2E = 0xBFB8AA3B
EPS = 0x358637BD
ONES = 0x3F803F80

SLOT = 53248
SLOTB = [57344, 110592, 4096]
WREG = 32768
TG = 5120
LDS = 163840
E_U = [0, 4096, 8192]
L_U = [49152, 53248, 57344]
ATT = 98304

P_X, P_QKV, P_WO, P_BX, P_WG, P_WU, P_WD, P_GW, P_OUT, P_DBG, P_WS = 4, 6, 8, 10, 12, 14, 16, 18, 20, 22, 24
S_X, S_G, S_U, S_KV, S_WS, S_T, S_GW, S_W2, S_OUT, S_DBG = 28, 32, 36, 40, 44, 48, 52, 56, 60, 64
RT, CT, WV, RT2, CT2, RB, GOFF, UOFF = 68, 69, 70, 71, 72, 73, 74, 75
T0, T1, T2, T3 = 76, 77, 78, 79
SX, SG, SKV, SGS, XL, WL, STO, STS = 80, 81, 82, 83, 84, 85, 86, 87
DELTA, CNT, SLOTI, L2E = 80, 81, 82, 83
SW, SWB, SWE, SA, SAB, SAE, UB, MASK = 88, 89, 90, 91, 92, 93, 94, 95
PC = 26
STV = 14
POLLS = 0x8000


def srd(a, d, ptr, nbytes):
    a('s_mov_b32 s%d, s%d' % (d, ptr))
    a('s_and_b32 s%d, s%d, 0xffff' % (d + 1, ptr + 1))
    if isinstance(nbytes, str):
        a('s_mov_b32 s%d, %s' % (d + 2, nbytes))
    else:
        a('s_mov_b32 s%d, 0x%x' % (d + 2, nbytes))
    a('s_mov_b32 s%d, 0x00020000' % (d + 3))


def mf(d, x, y, c=None):
    cc = vr(d, 4) if c is None else c
    return 'v_mfma_f32_16x16x32_bf16 %s, %s, %s, %s' % (vr(d, 4), vr(x, 4), vr(y, 4), cc)


def mf16(d, x, y, c=None):
    cc = vr(d, 4) if c is None else c
    return 'v_mfma_f32_16x16x16_bf16 %s, %s, %s, %s' % (vr(d, 4), vr(x, 2), vr(y, 2), cc)


def stamp(a, idx, real=False):
    if not DIAG:
        return
    a('%s s[96:97]' % ('s_memrealtime' if real else 's_memtime'))
    a('s_waitcnt lgkmcnt(0)')
    a('v_writelane_b32 v%d, s96, %s' % (STV, idx))


def stamp_out(a):
    if not DIAG:
        return
    a('s_waitcnt vmcnt(0)')
    stamp(a, 61)
    stamp(a, 63, True)
    a('v_lshrrev_b32 v2, 6, v0')
    a('v_readfirstlane_b32 s99, v2')
    a('s_lshl_b32 s98, s2, 3')
    a('s_add_u32 s98, s98, s99')
    a('s_lshl_b32 s98, s98, 8')
    a('s_add_u32 s98, s98, 0x%x' % WS_STAMP)
    a('v_and_b32 v2, 63, v0')
    a('v_lshlrev_b32 v2, 2, v2')
    a('s_nop 4')
    a('buffer_store_dword v%d, v2, %s, s98 offen' % (STV, sr(S_WS, 4)))


def poll(a, vm, name, loads, test):
    a('s_mov_b32 s%d, 0x%x' % (PC, POLLS))
    a.label(name)
    for l in loads:
        vm.op(l, 'poll')
    vm.all()
    a(test)
    a('s_cbranch_scc1 %s_ok' % name)
    a('s_sleep 1')
    a('s_sub_u32 s%d, s%d, 1' % (PC, PC))
    a('s_cbranch_scc0 %s' % name)
    a.label(name + '_ok')


def w2_addr(a, VW2, TA, base_s):
    a('v_lshrrev_b32 v6, 3, v1')
    a('s_lshl_b32 s%d, s%d, 7' % (T0, CT2))
    a('v_lshl_add_u32 v6, v6, 10, s%d' % T0)
    a('v_bfe_u32 v7, v1, 1, 2')
    a('v_xor_b32 v7, v7, v3')
    a('v_lshl_add_u32 v6, v7, 5, v6')
    a('v_and_b32 v7, 1, v1')
    a('v_lshl_add_u32 v%d, v7, 4, v6' % VW2)
    for j in range(1, 4):
        a('v_add_u32 v%d, %d, v%d' % (VW2 + j, j * 7168, VW2))
    a('v_lshrrev_b32 v6, 2, v1')
    a('v_lshl_add_u32 v6, v6, 7, s%d' % base_s)
    a('v_and_b32 v7, 3, v1')
    a('v_lshl_add_u32 v6, v7, 3, v6')
    a('v_bfe_u32 v7, v1, 3, 2')
    for cb in range(4):
        a('v_xor_b32 v8, %d, v7' % cb)
        a('v_lshl_add_u32 v%d, v8, 5, v6' % (TA + cb))


def w2_dma(vm, a, VW2, unit, tag, step_inc):
    a('s_add_u32 m0, s%d, %d' % (UB, unit))
    a('s_nop 0')
    for j in range(4):
        vm.op('buffer_load_dwordx4 v%d, %s, s%d offen offset:%d lds' % (VW2 + j, sr(S_W2, 4), SW, j * 1024), tag)
    a(step_inc)


def w2_reads(TA, dst, unit):
    r = []
    for cb in range(4):
        r.append('ds_read_b64_tr_b16 %s, v%d offset:%d' % (vr(dst + 4 * cb, 2), TA + cb, unit))
        r.append('ds_read_b64_tr_b16 %s, v%d offset:%d' % (vr(dst + 4 * cb + 2, 2), TA + cb, unit + 2048))
    return r


def g_load(a, vm, GV):
    a('s_lshl_b32 s%d, s%d, 3' % (T0, RT2))
    a('s_add_u32 s%d, s%d, s%d' % (T0, T0, WV))
    a('s_lshl_b32 s%d, s%d, 5' % (T0, T0))
    a('s_add_u32 s%d, s%d, 0x%x' % (T0, T0, WS_G))
    a('v_lshrrev_b32 v6, 3, v1')
    a('v_lshlrev_b32 v6, 2, v6')
    vm.op('buffer_load_dword v%d, v6, %s, s%d offen sc1' % (GV, sr(S_WS, 4), T0), 'G')


def part_write(a, ACC2, units):
    a('v_and_b32 v6, 7, v1')
    a('v_xor_b32 v6, v6, v3')
    a('v_lshl_add_u32 v7, v4, 8, s%d' % UB)
    a('v_lshl_add_u32 v8, v6, 4, v7')
    a('v_xor_b32 v9, 64, v8')
    for cb in range(4):
        for sb in range(4):
            a('ds_write_b128 v%d, %s offset:%d' % (8 + (cb & 1), vr(ACC2 + (cb * 4 + sb) * 4, 4), units[sb] + (cb >> 1) * 128))


def final(a, GV):
    R = 64
    for p in range(8):
        for hf in range(2):
            off = 12288 * p if p < 4 else 16384 * (p - 4)
            a('ds_read_b128 %s, v%d offset:%d' % (vr(R + (p * 2 + hf) * 4, 4), (10 if p < 4 else 12) + hf, off))
    a('s_lshl_b32 s%d, s%d, 3' % (T0, RT2))
    a('s_add_u32 s%d, s%d, s%d' % (T0, T0, WV))
    a('s_lshl_b32 s%d, s%d, 13' % (T0, T0))
    a('s_lshl_b32 s%d, s%d, 7' % (T1, CT2))
    a('s_add_u32 s%d, s%d, s%d' % (T0, T0, T1))
    a('v_lshrrev_b32 v6, 3, v1')
    a('v_and_b32 v7, 7, v1')
    a('v_lshlrev_b32 v7, 4, v7')
    a('v_lshl_add_u32 v6, v6, 10, v7')
    a('s_waitcnt vmcnt(0)')
    a('v_sub_f32 v8, 1.0, v%d' % GV)
    a('v_cvt_pk_bf16_f32 v8, v8, v8')
    a('v_lshlrev_b32 v8, 16, v8')
    for grp in range(2):
        b = R + grp * 32
        for p in range(1, 4):
            a('s_waitcnt lgkmcnt(%d)' % (14 - grp * 8 - p * 2))
            for j in range(4):
                a('v_pk_add_f32 %s, %s, %s' % (vr(b + 2 * j, 2), vr(b + 2 * j, 2), vr(b + p * 8 + 2 * j, 2)))
        if grp == 0:
            for j in range(8):
                a('v_mul_f32 v%d, v%d, v8' % (b + j, b + j))
    for j in range(8):
        a('v_fma_f32 v%d, v%d, v%d, v%d' % (R + j, R + 32 + j, GV, R + j))
    for j in range(4):
        a('v_cvt_pk_bf16_f32 v%d, v%d, v%d' % (16 + j, R + 2 * j, R + 2 * j + 1))
    a('buffer_store_dwordx4 v[16:19], v6, %s, s%d offen' % (sr(S_OUT, 4), T0))


def final_addr(a):
    a('s_lshr_b32 s%d, s%d, 1' % (T0, WV))
    a('s_lshl_b32 s%d, s%d, 12' % (T1, T0))
    a('s_add_u32 s%d, s%d, %d' % (T2, T1, ATT))
    a('s_cmp_eq_u32 s%d, 3' % T0)
    a('s_cselect_b32 s%d, %d, s%d' % (T1, L_U[0], T1))
    a('s_and_b32 s%d, s%d, 1' % (T0, WV))
    a('s_lshl_b32 s%d, s%d, 11' % (T0, T0))
    a('v_lshrrev_b32 v6, 3, v1')
    a('v_and_b32 v7, 7, v1')
    a('v_lshlrev_b32 v7, 1, v7')
    a('v_xor_b32 v7, v7, v6')
    a('v_lshl_add_u32 v6, v6, 8, s%d' % T0)
    a('v_lshl_add_u32 v6, v7, 4, v6')
    a('v_xor_b32 v7, 16, v6')
    a('v_add_u32 v10, s%d, v6' % T1)
    a('v_add_u32 v11, s%d, v7' % T1)
    a('v_add_u32 v12, s%d, v6' % T2)
    a('v_add_u32 v13, s%d, v7' % T2)


def gen(a):
    K = NAME + '_kernel'
    a.raw('.globl %s' % K)
    a.raw('.p2align 8')
    a.raw('.type %s,@function' % K)
    a.label(K)
    a('s_cmp_ge_u32 s2, 256')
    a('s_cbranch_scc1 k_end')
    if DIAG:
        a('v_mov_b32 v%d, 0' % STV)
    stamp(a, 0)
    stamp(a, 62, True)
    a('s_load_dwordx16 s[4:19], s[0:1], 0')
    a('s_load_dwordx4 s[20:23], s[0:1], 64')
    a('s_load_dwordx2 s[24:25], s[0:1], 80')
    a('v_lshrrev_b32 v2, 6, v0')
    a('v_and_b32 v1, 63, v0')
    a('v_readfirstlane_b32 s%d, v2' % WV)
    a('s_and_b32 s%d, s2, 7' % T0)
    a('s_lshr_b32 s%d, s2, 3' % T1)
    a('s_and_b32 s%d, s%d, 1' % (T2, T0))
    a('s_lshl_b32 s%d, s%d, 2' % (T2, T2))
    a('s_and_b32 s%d, s%d, 3' % (T3, T1))
    a('s_add_u32 s%d, s%d, s%d' % (RT, T2, T3))
    a('s_lshl_b32 s%d, s%d, 2' % (RT2, T0))
    a('s_add_u32 s%d, s%d, s%d' % (RT2, RT2, T3))
    a('s_lshr_b32 s%d, s%d, 1' % (T2, T0))
    a('s_lshl_b32 s%d, s%d, 3' % (T2, T2))
    a('s_lshr_b32 s%d, s%d, 2' % (CT2, T1))
    a('s_add_u32 s%d, s%d, s%d' % (CT, T2, CT2))
    a('v_lshrrev_b32 v3, 4, v1')
    a('v_and_b32 v4, 15, v1')
    a('v_lshlrev_b32 v5, 4, v1')
    a('s_cmp_ge_u32 s%d, 4' % WV)
    a('s_cbranch_scc1 k_C')
    gen_loader(a)
    gen_compute(a)
    a.label('k_end')
    a('s_endpgm')


def gen_loader(a):
    vm = Cnt(a, 'vmcnt', 63)
    lg = Cnt(a, 'lgkmcnt', 15)
    VX, VG, VU, VKV, VT = 32, 40, 42, 44, 45
    TD = 46
    DBV = 54
    VW2, TA, GV = 56, 60, 15
    a('s_setprio 3')
    a('s_cmp_ge_u32 s%d, 28' % CT)
    a('s_cselect_b32 s%d, 6, 7' % RB)
    a('s_lshl_b32 s%d, s%d, 9' % (RB, RB))
    a('s_lshl_b32 s%d, s%d, 7' % (T0, CT))
    a('s_sub_u32 s%d, s%d, 28' % (T1, CT))
    a('s_lshl_b32 s%d, s%d, 8' % (T1, T1))
    a('s_add_u32 s%d, s%d, 128' % (T2, T1))
    a('s_cmp_ge_u32 s%d, 28' % CT)
    a('s_cselect_b32 s%d, s%d, s%d' % (GOFF, T1, T0))
    a('s_cselect_b32 s%d, s%d, s%d' % (UOFF, T2, T0))
    a('v_lshrrev_b32 v2, 5, v1')
    a('s_cmp_eq_u32 s%d, 0' % WV)
    a('s_cbranch_scc1 k_tx')
    a('s_cmp_eq_u32 s%d, 3' % WV)
    a('s_cbranch_scc1 k_tkv')
    a('s_and_b32 s%d, s%d, 3' % (T0, RT))
    a('s_lshl_b32 s%d, s%d, 4' % (T0, T0))
    a('v_lshl_add_u32 v%d, v2, 6, s%d' % (VT, T0))
    a('v_add_u32 v%d, v%d, v4' % (VT, VT))
    a('v_mul_lo_u32 v%d, v%d, s%d' % (VT, VT, RB))
    a('s_lshl_b32 s%d, s%d, 7' % (STS, RB))
    a('s_cmp_eq_u32 s%d, 1' % WV)
    a('s_cselect_b32 s%d, s%d, s%d' % (STO, GOFF, UOFF))
    a('s_waitcnt lgkmcnt(0)')
    a('s_cselect_b64 s[%d:%d], s[%d:%d], s[%d:%d]' % (S_T, S_T + 1, P_WG, P_WG + 1, P_WU, P_WU + 1))
    a('s_cmp_ge_u32 s%d, 28' % CT)
    a('s_cselect_b64 s[%d:%d], s[%d:%d], s[%d:%d]' % (S_T, S_T + 1, P_QKV, P_QKV + 1, S_T, S_T + 1))
    a('s_lshl_b32 s%d, s%d, 9' % (S_T + 2, RB))
    a('s_branch k_tgo')
    a.label('k_tx')
    a('s_lshl_b32 s%d, s%d, 3' % (T0, RT))
    a('s_and_b32 s%d, s%d, 7' % (T1, CT))
    a('s_add_u32 s%d, s%d, s%d' % (T0, T0, T1))
    a('s_lshl_b32 s%d, s%d, 15' % (STO, T0))
    a('v_and_b32 v6, 31, v1')
    a('v_lshlrev_b32 v%d, 10, v6' % VT)
    a('v_lshl_add_u32 v%d, v2, 7, v%d' % (VT, VT))
    a('s_mov_b32 s%d, 256' % STS)
    a('s_mov_b32 s%d, 0x%x' % (S_T + 2, 2048 * 1024))
    a('s_waitcnt lgkmcnt(0)')
    a('s_mov_b64 s[%d:%d], s[%d:%d]' % (S_T, S_T + 1, P_X, P_X + 1))
    a('s_branch k_tgo')
    a.label('k_tkv')
    a('s_and_b32 s%d, s%d, 3' % (T0, RT))
    a('s_lshl_b32 s%d, s%d, 2' % (T0, T0))
    a('s_and_b32 s%d, s%d, 3' % (T2, CT))
    a('s_add_u32 s%d, s%d, s%d' % (T0, T0, T2))
    a('s_lshl_b32 s%d, s%d, 2' % (T0, T0))
    a('v_lshl_add_u32 v%d, v2, 6, s%d' % (VT, T0))
    a('v_and_b32 v6, 3, v4')
    a('v_add_u32 v%d, v%d, v6' % (VT, VT))
    a('v_mul_u32_u24 v%d, 3072, v%d' % (VT, VT))
    a('v_bfe_u32 v6, v4, 2, 1')
    a('v_lshl_add_u32 v%d, v6, 10, v%d' % (VT, VT))
    a('s_lshr_b32 s%d, s%d, 2' % (T2, CT))
    a('s_lshl_b32 s%d, s%d, 7' % (T2, T2))
    a('s_add_u32 s%d, s%d, 1024' % (STO, T2))
    a('s_mov_b32 s%d, 0x%x' % (STS, 128 * 3072))
    a('s_mov_b32 s%d, 0x%x' % (S_T + 2, 512 * 3072))
    a('s_waitcnt lgkmcnt(0)')
    a('s_mov_b64 s[%d:%d], s[%d:%d]' % (S_T, S_T + 1, P_QKV, P_QKV + 1))
    a.label('k_tgo')
    a('s_and_b32 s%d, s%d, 0xffff' % (S_T + 1, S_T + 1))
    a('s_mov_b32 s%d, 0x00020000' % (S_T + 3))
    tcount = [0]

    def touch():
        p = tcount[0]
        tcount[0] += 1
        vm.op('buffer_load_dword v%d, v%d, %s, s%d offen' % (TD + p, VT, sr(S_T, 4), STO), 'T%d' % p)
        a('s_add_u32 s%d, s%d, s%d' % (STO, STO, STS))

    NT0 = {'a': 2, 'n': 0, 'b': 1, 'c': 4}[SCHED[0]]
    for _ in range(NT0):
        touch()
    a('v_lshrrev_b32 v6, 3, v1')
    a('v_and_b32 v7, 7, v1')
    a('v_xor_b32 v17, v7, v3')
    a('v_xor_b32 v18, 4, v17')
    a('s_lshl_b32 s%d, s%d, 8' % (T0, RT))
    a('s_lshl_b32 s%d, s%d, 6' % (T1, WV))
    a('s_add_u32 s%d, s%d, s%d' % (T0, T0, T1))
    a('s_lshl_b32 s%d, s%d, 10' % (T0, T0))
    a('v_lshl_add_u32 v19, v6, 10, s%d' % T0)
    a('v_lshl_add_u32 v20, v17, 4, v19')
    a('v_lshl_add_u32 v21, v18, 4, v19')
    for jj in range(8):
        a('v_add_u32 v%d, 0x%x, v%d' % (VX + jj, jj * 8192 - (jj & 3) * 1024, 20 + (jj & 1)))
    a('s_lshl_b32 s%d, s%d, 4' % (T0, WV))
    a('v_add_u32 v19, s%d, v6' % T0)
    a('v_mul_lo_u32 v19, v19, s%d' % RB)
    a('v_and_b32 v20, 1, v7')
    a('v_lshl_add_u32 v19, v20, 4, v19')
    a('v_lshrrev_b32 v20, 1, v7')
    a('v_and_b32 v21, 1, v3')
    a('v_xor_b32 v20, v20, v21')
    a('v_xor_b32 v21, 2, v20')
    a('v_lshl_add_u32 v20, v20, 5, v19')
    a('v_lshl_add_u32 v21, v21, 5, v19')
    a('s_lshl_b32 s%d, s%d, 3' % (T1, RB))
    a('s_sub_u32 s%d, s%d, 1024' % (T1, T1))
    a('v_add_u32 v21, s%d, v21' % T1)
    a('v_add_u32 v%d, s%d, v20' % (VG, GOFF))
    a('v_add_u32 v%d, s%d, v21' % (VG + 1, GOFF))
    a('v_add_u32 v%d, s%d, v20' % (VU, UOFF))
    a('v_add_u32 v%d, s%d, v21' % (VU + 1, UOFF))
    a('v_lshrrev_b32 v19, 2, v1')
    a('v_add_u32 v19, s%d, v19' % T0)
    a('v_mul_u32_u24 v19, 3072, v19')
    a('v_bfe_u32 v20, v1, 1, 1')
    a('v_xor_b32 v20, v20, v2')
    a('v_lshl_add_u32 v19, v20, 10, v19')
    a('v_and_b32 v20, 1, v1')
    a('v_lshl_add_u32 v19, v20, 4, v19')
    a('s_lshl_b32 s%d, s%d, 5' % (T1, CT))
    a('s_add_u32 s%d, s%d, 1024' % (T1, T1))
    a('v_add_u32 v%d, s%d, v19' % (VKV, T1))
    a('s_lshl_b32 s%d, s%d, 13' % (XL, WV))
    a('s_mul_i32 s%d, s%d, %d' % (WL, WV, TG))
    a('s_add_u32 s%d, s%d, %d' % (WL, WL, WREG))
    a('s_mov_b32 s%d, 0' % SX)
    a('s_mov_b32 s%d, 0' % SG)
    a('s_mov_b32 s%d, 0' % SKV)
    a('s_lshl_b32 s%d, s%d, 6' % (SGS, RB))
    srd(a, S_X, P_X, 2048 * 1024)
    a('s_cmp_ge_u32 s%d, 28' % CT)
    a('s_cselect_b64 s[%d:%d], s[%d:%d], s[%d:%d]' % (P_WG, P_WG + 1, P_QKV, P_QKV + 1, P_WG, P_WG + 1))
    a('s_cselect_b64 s[%d:%d], s[%d:%d], s[%d:%d]' % (P_WU, P_WU + 1, P_QKV, P_QKV + 1, P_WU, P_WU + 1))
    a('s_lshl_b32 s%d, s%d, 9' % (T0, RB))
    srd(a, S_G, P_WG, 's%d' % T0)
    srd(a, S_U, P_WU, 's%d' % T0)
    srd(a, S_KV, P_QKV, 512 * 3072)

    def dma(stage):
        sb = SLOTB[stage % 3]
        r = []
        for half in range(2):
            r.append('s_add_u32 m0, s%d, %d' % (XL, sb + half * 4096))
            r.append('s_nop 0')
            for q in range(4):
                r.append('buffer_load_dwordx4 v%d, %s, s%d offen offset:%d lds' % (VX + half * 4 + q, sr(S_X, 4), SX, q * 1024))
        r.append('s_add_u32 m0, s%d, %d' % (WL, sb))
        r.append('s_add_u32 s%d, s%d, 128' % (SX, SX))
        for q in range(2):
            r.append('buffer_load_dwordx4 v%d, %s, s%d offen offset:%d lds' % (VG + q, sr(S_G, 4), SG, q * 1024))
        r.append('s_add_u32 m0, s%d, %d' % (WL, sb + 2048))
        r.append('s_nop 0')
        for q in range(2):
            r.append('buffer_load_dwordx4 v%d, %s, s%d offen offset:%d lds' % (VU + q, sr(S_U, 4), SG, q * 1024))
        r.append('s_add_u32 m0, s%d, %d' % (WL, sb + 4096))
        r.append('s_add_u32 s%d, s%d, s%d' % (SG, SG, SGS))
        r.append('buffer_load_dwordx4 v%d, %s, s%d offen lds' % (VKV, sr(S_KV, 4), SKV))
        r.append('s_add_u32 s%d, s%d, %d' % (SKV, SKV, 64 * 3072))
        return [(x, stage) for x in r]

    def emit(lst, n=None):
        c = 0
        while lst and (n is None or c < n):
            t, st = lst.pop(0)
            if t.startswith('buffer_load'):
                vm.op(t, 'D%d' % st)
                c += 1
            else:
                a(t)

    if NT0:
        vm.wait('T0')
    stamp(a, 1)
    emit(dma(0))
    d1 = dma(1)
    emit(d1, PRE)
    srd(a, S_WS, P_WS, WS_SIZE)
    srd(a, S_W2, P_WD, 1792 * 1024)
    srd(a, S_OUT, P_OUT, 2048 * 1024)
    srd(a, S_DBG, P_DBG, 256)
    a('s_mul_i32 s%d, s%d, 12288' % (UB, WV))
    w2_addr(a, VW2, TA, UB)
    final_addr(a)
    a('s_mul_i32 s%d, s%d, 7' % (T0, CT2))
    a('s_lshr_b32 s%d, s%d, 2' % (T0, T0))
    a('s_mul_i32 s%d, s%d, 14' % (T1, WV))
    a('s_lshl_b32 s%d, s%d, 15' % (SWB, T1))
    a('s_add_u32 s%d, s%d, %d' % (SWE, SWB, 14 * 32768))
    a('s_lshl_b32 s%d, s%d, 15' % (T2, T0))
    a('s_add_u32 s%d, s%d, s%d' % (SW, SWB, T2))
    a('s_mul_i32 s%d, s%d, 72' % (T2, RT2))
    a('s_add_u32 s%d, s%d, s%d' % (T2, T2, T1))
    a('s_lshl_b32 s%d, s%d, 12' % (SAB, T2))
    a('s_add_u32 s%d, s%d, %d' % (SAE, SAB, 14 * 4096))
    a('s_lshl_b32 s%d, s%d, 12' % (T2, T0))
    a('s_add_u32 s%d, s%d, s%d' % (SA, SAB, T2))
    a('s_mul_i32 s%d, s%d, 7' % (T0, WV))
    a('s_lshl_b32 s%d, 0x7f, s%d' % (MASK, T0))
    a('v_and_b32 v2, 31, v1')
    a('v_lshlrev_b32 v2, 2, v2')
    winc = ['s_add_u32 s%d, s%d, 32768' % (SW, SW), 's_cmp_eq_u32 s%d, s%d' % (SW, SWE),
            's_cselect_b32 s%d, s%d, s%d' % (SW, SWB, SW)]
    ainc = ['s_add_u32 s%d, s%d, 4096' % (SA, SA), 's_cmp_eq_u32 s%d, s%d' % (SA, SAE),
            's_cselect_b32 s%d, s%d, s%d' % (SA, SAB, SA)]
    stamp(a, 2)
    vm.wait('D0')
    a('s_barrier')
    stamp(a, 3)
    stamp(a, 45, True)
    emit(d1)
    WR = 64
    ACC2 = 192

    def wd(i, unit):
        w2_dma(vm, a, VW2, unit, 'W%d' % i, winc)

    def wr(i, unit):
        vm.wait('W%d' % i)
        for r in w2_reads(TA, WR + 16 * i, unit):
            lg.op(r, 'R%d' % i)

    for s in range(8):
        if NT0 and tcount[0] < 4 and s % 2 == 0:
            touch()
        if s + 2 < 8:
            emit(dma(s + 2))
        if s == 3:
            vm.op('buffer_load_dword v%d, v2, %s, 0 offen sc1' % (DBV, sr(S_DBG, 4)), 'I')
        if s == 5:
            for r in range(64):
                a('v_mov_b32 v%d, 0' % (ACC2 + r))
            vm.wait('I')
            a('v_cmp_ne_u32 vcc, 0, v%d' % DBV)
            a('s_cmp_eq_u64 vcc, -1')
            a('s_cbranch_scc1 k_init_ok')
            a('s_mov_b32 s%d, 0x%x' % (PC, POLLS))
            a.label('k_init')
            a('buffer_load_dword v%d, v2, %s, 0 offen sc1' % (DBV, sr(S_DBG, 4)))
            a('s_waitcnt vmcnt(0)')
            a('v_cmp_ne_u32 vcc, 0, v%d' % DBV)
            a('s_cmp_eq_u64 vcc, -1')
            a('s_cbranch_scc1 k_init_ok')
            a('s_sleep 1')
            a('s_sub_u32 s%d, s%d, 1' % (PC, PC))
            a('s_cbranch_scc0 k_init')
            a.label('k_init_ok')
        if s == 6 and not P1ONLY:
            for i in range(3):
                wd(i, E_U[i])
        if s == 7 and not P1ONLY:
            wd(3, L_U[0])
            wd(4, L_U[1])
            for i in range(3):
                wr(i, E_U[i])
                lg.all()
                wd(5 + i, E_U[i])
        stamp(a, 5 + 3 * s)
        if s + 1 < 8:
            vm.wait('D%d' % (s + 1))
        stamp(a, 6 + 3 * s)
        a('s_barrier')
        stamp(a, 7 + 3 * s)
        stamp(a, 46 + s, True)
    a('v_lshlrev_b32 v6, 2, v1')
    a('v_add_u32 v7, s%d, v6' % UB)
    a('v_and_b32 v8, 12, v6')
    a('v_add_u32 v8, s%d, v8' % UB)
    for w in range(4):
        lg.op('ds_read_b32 v%d, v7 offset:%d' % (16 + w, L_U[2] + w * 256), 'kv')
    for w in range(4):
        lg.op('ds_read_b32 v%d, v8 offset:%d' % (20 + w, L_U[2] + 1024 + w * 256), 'kv')
    a('s_lshl_b32 s%d, s%d, 11' % (T0, CT))
    a('s_add_u32 s%d, s%d, 0x%x' % (T0, T0, WS_BLK))
    a('s_lshl_b32 s%d, s%d, 8' % (T1, WV))
    a('s_add_u32 s%d, s%d, s%d' % (T1, T1, T0))
    a('s_lshl_b32 s%d, s%d, 4' % (T2, WV))
    a('s_add_u32 s%d, s%d, s%d' % (T2, T2, T0))
    a('s_lshl_b32 s%d, s%d, 2' % (T3, RT))
    a('s_add_u32 s%d, s%d, s%d' % (T3, T3, WV))
    a('s_lshl_b32 s%d, s%d, 2' % (T3, T3))
    a('s_add_u32 s%d, s%d, s%d' % (T3, T3, T0))
    lg.all()
    a('v_add_f32 v16, v16, v17')
    a('v_add_f32 v18, v18, v19')
    a('v_add_f32 v20, v20, v21')
    a('v_add_f32 v22, v22, v23')
    a('v_add_f32 v16, v16, v18')
    a('v_add_f32 v20, v20, v22')
    a('v_mov_b32 v9, 1')
    vm.op('buffer_atomic_add_f32 v16, v6, %s, s%d offen' % (sr(S_WS, 4), T1), 'AT')
    a('s_mov_b64 exec, 15')
    vm.op('buffer_atomic_add_f32 v20, v6, %s, s%d offen offset:%d' % (sr(S_WS, 4), T2, O_Z), 'AT')
    a('s_mov_b64 exec, -1')
    stamp(a, 30)

    def kflag():
        vm.wait('AT')
        a('s_mov_b64 exec, 1')
        vm.op('buffer_store_dword v9, off, %s, s%d offset:%d sc1' % (sr(S_WS, 4), T3, O_KF), 'KF')
        a('s_mov_b64 exec, -1')

    if P1ONLY:
        kflag()
        stamp_out(a)
        a('s_endpgm')
        return
    wd(10, L_U[2]) if False else None
    for i in (3, 4):
        wr(i, L_U[i - 3])
        lg.all()
        wd(5 + i, L_U[i - 3])
    wd(10, L_U[2])
    kflag()
    stamp(a, 31)
    for i in (5, 6, 7):
        wr(i, E_U[i - 5])
        lg.all()
        wd(6 + i, E_U[i - 5])
    stamp(a, 32)
    UNIT = {8: L_U[0], 9: L_U[1], 10: L_U[2], 11: E_U[0], 12: E_U[1], 13: E_U[2]}
    a('s_lshl_b32 s%d, s%d, 11' % (T0, RT2))
    a('s_add_u32 s%d, s%d, 0x%x' % (T0, T0, WS_BLK))
    poll(a, vm, 'k_pollL', ['buffer_load_dword v9, v2, %s, s%d offen offset:%d sc1' % (sr(S_WS, 4), T0, O_F)],
         ['v_cmp_ne_u32 vcc, 0, v9', 's_and_b32 s%d, vcc_lo, s%d' % (T1, MASK), 's_cmp_eq_u32 s%d, s%d' % (T1, MASK)])
    stamp(a, 33)
    stamp(a, 56, True)
    TA2 = 6
    for j in range(4):
        a('v_mov_b32 v%d, v%d' % (TA2 + j, TA + j)) if False else None
    free = [16, 32]
    extra = 48
    ag = {}
    nxt = [0]

    def aload():
        if nxt[0] < 14 and free:
            i = nxt[0]; nxt[0] += 1
            g = free.pop(0); ag[i] = g
            for sb in range(4):
                vm.op('buffer_load_dwordx4 %s, v5, %s, s%d offen offset:%d sc1' % (vr(g + 4 * sb, 4), sr(S_WS, 4), SA, sb * 1024), 'A%d' % i)
            a(ainc)
            return True
        return False

    aload(); aload()
    g_load(a, vm, GV)
    wg = {i: WR + 16 * i for i in range(8)}
    for i in range(14):
        pre = []
        if i + 1 >= 8 and i + 1 < 14:
            g = free.pop(0); wg[i + 1] = g
            vm.wait('W%d' % (i + 1))
            pre = w2_reads(TA, g, UNIT[i + 1])
        vm.wait('A%d' % i)
        if i >= 8:
            lg.wait('R%d' % i)
        k = 0
        for cb in range(4):
            for sb in range(4):
                a(mf(ACC2 + (cb * 4 + sb) * 4, wg[i] + 4 * cb, ag[i] + 4 * sb))
                if k < len(pre):
                    lg.op(pre[k], 'R%d' % (i + 1)); k += 1
        free.append(ag[i]); free.append(wg[i])
        while aload():
            pass
        if i in (3, 7):
            stamp(a, 34 + i // 4)
    stamp(a, 36)
    part_write(a, ACC2, [E_U[0], E_U[1], E_U[2], L_U[0]])
    a('s_waitcnt lgkmcnt(0)')
    stamp(a, 37)
    a('s_barrier')
    stamp(a, 38)
    a('s_branch k_final')


def gen_compute(a):
    a.label('k_C')
    vm = Cnt(a, 'vmcnt', 63)
    XS = [32, 48]
    WRING = 64
    XA, WA, KA = 84, 86, 90
    NL = 92
    KW = 93
    ACC = 96
    GV = 15
    W = 27

    def acc(cb, sb):
        return ACC + (cb * 4 + sb) * 4

    a('s_sub_u32 s%d, s%d, 4' % (W, WV))
    a('s_mul_i32 s%d, s%d, 37' % (T0, CT))
    a('s_lshr_b32 s%d, s%d, 8' % (T0, T0))
    a('s_mul_i32 s%d, s%d, 7' % (T1, T0))
    a('s_sub_u32 s%d, s%d, 24' % (T2, CT))
    a('s_cmp_ge_u32 s%d, 28' % CT)
    a('s_cselect_b32 s%d, s%d, s%d' % (T0, T2, T0))
    a('s_cselect_b32 s%d, s%d, s%d' % (T1, CT, T1))
    a('s_lshl_b32 s%d, s%d, 2' % (T2, RT))
    a('s_add_u32 s%d, s%d, s%d' % (T2, T2, W))
    a('s_lshl_b32 s%d, s%d, 3' % (T2, T2))
    a('s_add_u32 s%d, s%d, s%d' % (T2, T2, T0))
    a('s_lshl_b32 s%d, s%d, 13' % (T3, T2))
    a('s_lshl_b32 s%d, s%d, 5' % (T2, T2))
    a('s_add_u32 s%d, s%d, 0x%x' % (T2, T2, WS_G))
    a('v_lshrrev_b32 v6, 3, v1')
    a('v_and_b32 v7, 7, v1')
    a('v_lshlrev_b32 v7, 4, v7')
    a('v_lshl_add_u32 v8, v6, 10, v7')
    a('v_lshlrev_b32 v6, 2, v6')
    a('s_waitcnt lgkmcnt(0)')
    srd(a, S_WS, P_WS, WS_SIZE)
    srd(a, S_X, P_X, 2048 * 1024)
    srd(a, S_GW, P_GW, 1024)
    srd(a, S_DBG, P_DBG, 256)
    a('s_cmp_lg_u32 s%d, s%d' % (T1, CT))
    a('s_cbranch_scc1 k_nogate')
    for n in range(8):
        a('buffer_load_dwordx4 %s, v8, %s, s%d offen offset:%d' % (vr(ACC + 4 * n, 4), sr(S_X, 4), T3, n * 128))
    for n in range(8):
        a('buffer_load_dwordx4 %s, v7, %s, 0 offen offset:%d' % (vr(ACC + 32 + 4 * n, 4), sr(S_GW, 4), n * 128))
    a.label('k_nogate')
    a('s_cmp_ge_u32 s2, 32')
    a('s_cbranch_scc1 k_noinit')
    a('s_cmp_lg_u32 s%d, 3' % W)
    a('s_cbranch_scc1 k_noinit')
    for j in range(4):
        a('v_mov_b32 v%d, 0' % (16 + j))
    a('s_lshl_b32 s%d, s2, 11' % T0)
    a('s_add_u32 s%d, s%d, 0x%x' % (T0, T0, WS_BLK))
    a('buffer_store_dwordx4 v[16:19], v5, %s, s%d offen sc1' % (sr(S_WS, 4), T0))
    a('buffer_store_dwordx4 v[16:19], v5, %s, s%d offen offset:1024 sc1' % (sr(S_WS, 4), T0))
    a('s_lshl_b32 s%d, s2, 2' % T0)
    a('v_mov_b32 v20, 1')
    a('s_waitcnt vmcnt(0)')
    a('s_mov_b64 exec, 1')
    a('buffer_store_dword v20, off, %s, s%d sc1' % (sr(S_DBG, 4), T0))
    a('s_mov_b64 exec, -1')
    a.label('k_noinit')
    a('s_lshl_b32 s%d, s%d, 13' % (T0, W))
    a('s_add_u32 s%d, s%d, %d' % (T0, T0, SLOTB[0]))
    a('v_lshl_add_u32 v16, v4, 7, s%d' % T0)
    a('v_bfe_u32 v17, v4, 1, 3')
    a('v_xor_b32 v17, v17, v3')
    a('v_lshl_add_u32 v%d, v17, 4, v16' % XA)
    a('v_xor_b32 v%d, 64, v%d' % (XA + 1, XA))
    a('v_lshrrev_b32 v16, 1, v3')
    a('v_mul_u32_u24 v16, %d, v16' % TG)
    a('v_and_b32 v17, 3, v4')
    a('v_lshl_add_u32 v16, v17, 3, v16')
    a('v_add_u32 v16, %d, v16' % (SLOTB[0] + WREG))
    a('v_and_b32 v17, 1, v3')
    a('v_lshrrev_b32 v18, 2, v4')
    a('v_lshl_add_u32 v18, v17, 3, v18')
    a('v_lshl_add_u32 v19, v18, 6, v16')
    a('v_lshl_add_u32 v%d, v17, 5, v19' % KA)
    a('v_add_u32 v%d, 4096, v%d' % (KA, KA))
    a('v_xor_b32 v%d, 32, v%d' % (KA + 1, KA))
    a('v_lshl_add_u32 v19, v18, 7, v16')
    a('v_bfe_u32 v18, v1, 3, 2')
    for cb in range(4):
        a('v_xor_b32 v20, %d, v18' % cb)
        a('v_lshl_add_u32 v%d, v20, 5, v19' % (WA + cb))
    a('v_mul_u32_u24 v16, 12288, v3')
    a('v_lshl_add_u32 v16, v4, 4, v16')
    a('s_lshl_b32 s%d, s%d, 8' % (T0, W))
    a('s_add_u32 s%d, s%d, %d' % (T0, T0, L_U[2]))
    a('v_add_u32 v%d, s%d, v16' % (KW, T0))
    a('v_mov_b32 v%d, 0x%x' % (NL, NLOG2E))
    a('s_mov_b32 s%d, 0x%x' % (L2E, LOG2E))
    a('s_mov_b32 s%d, 0' % SLOTI)
    a('s_mov_b32 s%d, 0' % CNT)
    srd(a, S_W2, P_WO, 512 * 1024)
    srd(a, S_OUT, P_OUT, 2048 * 1024)
    a('s_lshl_b32 s%d, s%d, 14' % (UB, W))
    a('s_add_u32 s%d, s%d, %d' % (UB, UB, ATT))
    a('v_mov_b32 v31, v6')
    final_addr(a)
    for r in range(64, 160):
        a('v_mov_b32 v%d, 0' % (ACC + r)) if False else None
    a('s_mul_i32 s%d, s%d, 37' % (T0, CT))
    a('s_lshr_b32 s%d, s%d, 8' % (T0, T0))
    a('s_mul_i32 s%d, s%d, 7' % (T1, T0))
    a('s_cmp_ge_u32 s%d, 28' % CT)
    a('s_cselect_b32 s%d, s%d, s%d' % (T1, CT, T1))
    a('s_cselect_b32 s%d, 1.0, 0' % MASK)
    for r in range(64, 160):
        a('v_mov_b32 v%d, s%d' % (ACC + r, MASK))
    a('s_cmp_lg_u32 s%d, s%d' % (T1, CT))
    a('s_cbranch_scc1 k_nogate2')
    a('s_lshl_b32 s%d, s%d, 2' % (T2, RT))
    a('s_add_u32 s%d, s%d, s%d' % (T2, T2, W))
    a('s_lshl_b32 s%d, s%d, 3' % (T2, T2))
    a('s_sub_u32 s%d, s%d, 24' % (T1, CT))
    a('s_cmp_ge_u32 s%d, 28' % CT)
    a('s_cselect_b32 s%d, s%d, s%d' % (T0, T1, T0))
    a('s_add_u32 s%d, s%d, s%d' % (T2, T2, T0))
    a('s_lshl_b32 s%d, s%d, 5' % (T2, T2))
    a('s_add_u32 s%d, s%d, 0x%x' % (T2, T2, WS_G))
    a('v_mov_b32 v16, 0')
    a('v_mov_b32 v17, 0')
    a('s_waitcnt vmcnt(0)')
    for n in range(32):
        a('v_dot2_f32_bf16 v%d, v%d, v%d, v%d' % (16 + (n & 1), ACC + n, ACC + 32 + n, 16 + (n & 1)))
    a('v_add_f32 v16, v16, v17')
    a('v_add_f32_dpp v16, v16, v16 quad_perm:[1,0,3,2] row_mask:0xf bank_mask:0xf')
    a('v_add_f32_dpp v16, v16, v16 quad_perm:[2,3,0,1] row_mask:0xf bank_mask:0xf')
    a('v_add_f32_dpp v16, v16, v16 row_half_mirror row_mask:0xf bank_mask:0xf')
    a('v_cvt_pk_bf16_f32 v16, v16, v16')
    a('v_lshlrev_b32 v16, 16, v16')
    a('v_mul_f32 v16, 0x%x, v16' % NLOG2E)
    a('v_exp_f32 v16, v16')
    a('v_add_f32 v16, 1.0, v16')
    a('v_rcp_f32 v16, v16')
    a('v_cvt_pk_bf16_f32 v16, v16, v16')
    a('v_lshlrev_b32 v16, 16, v16')
    a('buffer_store_dword v16, v31, %s, s%d offen sc1' % (sr(S_WS, 4), T2))
    a.label('k_nogate2')
    for j in range(4):
        a('v_mov_b32 v%d, 0x%x' % (6 + j, ONES))
    for r in range(16):
        a('v_mov_b32 v%d, 1.0' % (ACC + r))
    for r in range(16, 32):
        a('v_mov_b32 v%d, 0' % (ACC + r))
    for r in range(32, 64):
        a('v_mov_b32 v%d, s%d' % (ACC + r, MASK))

    def wread(f, cb, kk):
        d = WRING + 4 * (f % 5)
        if cb < 2:
            ad, off, st = KA + cb, kk * 2 * TG, 256
        else:
            ad, off, st = WA + (cb - 2) // 2, kk * 2 * TG + ((cb - 2) & 1) * 2048, 512
        return ['ds_read_b64_tr_b16 %s, v%d offset:%d' % (vr(d, 2), ad, off),
                'ds_read_b64_tr_b16 %s, v%d offset:%d' % (vr(d + 2, 2), ad, off + st)]

    def xread(kk, sb):
        return 'ds_read_b128 %s, v%d offset:%d' % (vr(XS[kk] + 4 * sb, 4), XA + kk, sb * 2048)

    def mma(f, cb, kk, sb):
        w = WRING + 4 * (f % 5)
        x = XS[kk] + 4 * sb
        return mf(acc(cb, sb), x, w) if cb < 2 else mf(acc(cb, sb), w, x)

    NORM = [(cb, kk) for kk in range(2) for cb in range(10)]

    def head_ops():
        r = []
        w0, w1, w2 = wread(0, 0, 0), wread(1, 1, 0), wread(2, 2, 0)
        r += [(0, w0[0], 'W0'), (0, w0[1], 'W0'), (1, xread(0, 0), 'X00'), (2, xread(0, 1), 'X01'), (3, xread(0, 2), 'X02'),
              (4, xread(0, 3), 'X03'), (5, w1[0], 'W1'), (6, w1[1], 'W1'), (8, w2[0], 'W2'), (9, w2[1], 'W2')]
        return r

    def stage(lg, order, gaps, nread=20):
        seen = set()
        for f, (cb, kk) in enumerate(order):
            if f + 3 < nread:
                c2, k2 = order[f + 3]
                w = wread(f + 3, c2, k2)
                gaps.setdefault(4 * f, []).insert(0, (w[0], 'W%d' % (f + 3)))
                gaps.setdefault(4 * f + 1, []).insert(0, (w[1], 'W%d' % (f + 3)))
        for f, (cb, kk) in enumerate(order):
            for sb in range(4):
                if sb == 0:
                    lg.wait('W%d' % f)
                if (kk, sb) not in seen:
                    seen.add((kk, sb))
                    lg.wait('X%d%d' % (kk, sb))
                a(mma(f, cb, kk, sb))
                for t, tag in gaps.get(4 * f + sb, []):
                    if t == 'BAR':
                        lg.all()
                        stamp(a, 'm0')
                        if DIAG:
                            a('s_add_u32 m0, m0, 1')
                        a('s_barrier')
                        stamp(a, 'm0')
                        if DIAG:
                            a('s_add_u32 m0, m0, 1')
                    elif tag:
                        lg.op(t, tag)
                    else:
                        a(t)

    stamp(a, 1)
    a('s_barrier')
    stamp(a, 2)
    stamp(a, 58, True)
    if DIAG:
        a('s_mov_b32 m0, 3')
    lg = Cnt(a, 'lgkmcnt', 15)
    for _, t, tag in head_ops():
        lg.op(t, tag)
    a.raw('.p2align 3')
    a.label('k_loop')
    gaps = {}

    def add(g, t, tag=None):
        gaps.setdefault(g, []).append((t, tag))

    for sb in range(4):
        add(4 * (2 + sb) + 2, xread(1, sb), 'X1%d' % sb)
    add(3, 's_add_u32 s%d, s%d, 1' % (SLOTI, SLOTI))
    add(3, 's_cmp_eq_u32 s%d, 2' % SLOTI)
    add(3, 's_cselect_b32 s%d, 0x%x, %d' % (DELTA, (-2 * SLOT) & 0xffffffff, SLOT)) if False else None
    add(6, 's_mov_b32 s%d, %d' % (DELTA, SLOT))
    add(6, 's_cselect_b32 s%d, 0x%x, s%d' % (DELTA, (-2 * SLOT) & 0xffffffff, DELTA))
    add(7, 's_cmp_eq_u32 s%d, 3' % SLOTI)
    add(7, 's_cselect_b32 s%d, 0, s%d' % (SLOTI, SLOTI))
    for f, r in ((6, XA), (7, XA + 1), (9, KA), (10, KA + 1), (11, WA), (13, WA + 1), (15, WA + 2), (16, WA + 3)):
        add(4 * f + 2, 'v_add_u32 v%d, s%d, v%d' % (r, DELTA, r))
    add(4 * 16 + 3, 'BAR')
    for g, t, tag in head_ops():
        add(4 * 17 + g, t, tag)
    add(4 * 19 + 2, 's_add_u32 s%d, s%d, 1' % (CNT, CNT))
    add(4 * 19 + 2, 's_cmp_lt_u32 s%d, 7' % CNT)
    stage(lg, NORM, gaps)
    a('s_cbranch_scc1 k_loop')
    LAST = [(0, 0), (1, 0), (2, 0), (0, 1), (1, 1), (3, 0), (4, 0), (5, 0), (2, 1), (3, 1), (4, 1), (5, 1),
            (6, 0), (7, 0), (8, 0), (9, 0), (6, 1), (7, 1), (8, 1), (9, 1)]
    gaps = {}
    for sb in range(4):
        add(2 + sb + (sb >> 1) * 2, xread(1, sb), 'X1%d' % sb)
    fl = []
    TP = 16
    for g in range(4):
        for r in range(4):
            fl.append(('v_fma_f32 v%d, v%d, s%d, v%d' % (TP + 4 * g + r, ACC + 4 * g + r, L2E, NL), 1))
    for g in range(4):
        for r in range(4):
            fl.append(('v_exp_f32_e64 v%d, v%d clamp' % (TP + 4 * g + r, TP + 4 * g + r), 2))
        if g >= 1:
            for r in range(4):
                fl.append(('v_max_f32 v%d, v%d, v%d' % (TP + 4 * (g - 1) + r, TP + 4 * (g - 1) + r, ACC + 4 * (g - 1) + r), 1))
    for r in range(4):
        fl.append(('v_max_f32 v%d, v%d, v%d' % (TP + 12 + r, TP + 12 + r, ACC + 12 + r), 1))
    for r in range(16):
        fl.append(('v_add_f32 v%d, 0x%x, v%d' % (TP + r, EPS, TP + r), 1))
    for j in range(8):
        fl.append(('v_cvt_pk_bf16_f32 v%d, v%d, v%d' % (ACC + j, TP + 2 * j, TP + 2 * j + 1), 1))
    for j in range(8):
        fl.append(('v_cvt_pk_bf16_f32 v%d, v%d, v%d' % (ACC + 8 + j, ACC + 16 + 2 * j, ACC + 17 + 2 * j), 1))
    g = 4 * 4 + 3
    while fl:
        used = 1 if (g % 4) < 2 else 0
        while fl and used + fl[0][1] <= 3:
            t, c = fl.pop(0)
            add(g, t)
            used += c
        g += 1
    g += 1
    add(g, mf(TP + 4, ACC, ACC + 8, '0'))
    add(g + 1, mf(TP + 8, ACC, 6, '0'))
    add(g + 2, mf(TP + 4, ACC + 4, ACC + 12))
    add(g + 3, mf(TP + 8, ACC + 4, 6))
    g += 8
    add(g, 'ds_write_b128 v%d, %s' % (KW, vr(TP + 4, 4)), 'KW')
    add(g + 1, 'ds_write_b128 v%d, %s offset:1024' % (KW, vr(TP + 8, 4)), 'KW')
    gb = max(g + 3, 4 * 16 + 3)
    assert gb < 80, gb
    add(gb, 'BAR')
    stage(lg, LAST, gaps)
    stamp(a, 20)
    stamp(a, 59, True)
    a('s_lshl_b32 s%d, s%d, 2' % (T0, RT))
    a('s_add_u32 s%d, s%d, s%d' % (T0, T0, W))
    a('s_lshl_b32 s%d, s%d, 11' % (T3, T0))
    a('s_lshl_b32 s%d, s%d, 2' % (T2, CT))
    a('s_add_u32 s%d, s%d, s%d' % (T3, T3, T2))
    a('s_add_u32 s%d, s%d, 0x%x' % (T3, T3, WS_BLK))
    a('s_mul_i32 s%d, s%d, %d' % (T0, T0, 72 * 4096))
    a('s_cmp_ge_u32 s%d, 28' % CT)
    a('s_cbranch_scc1 k_epiQ')
    a('s_lshl_b32 s%d, s%d, 13' % (T1, CT))
    a('s_add_u32 s%d, s%d, s%d' % (T0, T0, T1))
    a('s_add_u32 s%d, s%d, 4096' % (T1, T0))
    for hf in range(2):
        for sb in range(4):
            gA, uA, gB, uB = (acc(2 + 4 * hf + k, sb) for k in range(4))
            for j in range(2):
                a('v_pk_mul_f32 %s, %s, %s' % (vr(gA + 2 * j, 2), vr(gA + 2 * j, 2), vr(uA + 2 * j, 2)))
                a('v_pk_mul_f32 %s, %s, %s' % (vr(gB + 2 * j, 2), vr(gB + 2 * j, 2), vr(uB + 2 * j, 2)))
            a('v_cvt_pk_bf16_f32 v%d, v%d, v%d' % (gA, gA, gA + 1))
            a('v_cvt_pk_bf16_f32 v%d, v%d, v%d' % (gA + 1, gA + 2, gA + 3))
            a('v_cvt_pk_bf16_f32 v%d, v%d, v%d' % (gA + 2, gB, gB + 1))
            a('v_cvt_pk_bf16_f32 v%d, v%d, v%d' % (gA + 3, gB + 2, gB + 3))
            a('buffer_store_dwordx4 %s, v5, %s, s%d offen offset:%d sc1' % (vr(gA, 4), sr(S_WS, 4), T0 + hf, sb * 1024))
    a('s_branch k_epiE')
    a.label('k_epiQ')
    a('s_sub_u32 s%d, s%d, 14' % (T1, CT))
    a('s_lshl_b32 s%d, s%d, 14' % (T1, T1))
    a('s_add_u32 s%d, s%d, s%d' % (T0, T0, T1))
    a('s_mov_b32 s%d, 0x%x' % (SW, EPS))
    a('s_mov_b32 s%d, 0x%x' % (SW + 1, EPS))
    a('s_mov_b32 s%d, 0x%x' % (SAB, LOG2E))
    a('s_mov_b32 s%d, 0x%x' % (SAB + 1, LOG2E))
    a('v_mov_b32 v%d, v%d' % (NL + 1, NL))
    pairs = [(2, 4), (6, 8), (3, 5), (7, 9)]
    for i, (cA, cB) in enumerate(pairs):
        for sb in range(4):
            rr = [acc(cA, sb), acc(cA, sb) + 2, acc(cB, sb), acc(cB, sb) + 2]
            tp = 16 + (sb & 1) * 8
            for j, r in enumerate(rr):
                a('v_pk_fma_f32 %s, %s, %s, %s' % (vr(tp + 2 * j, 2), vr(r, 2), sr(SAB, 2), vr(NL, 2)))
            for j in range(8):
                a('v_exp_f32_e64 v%d, v%d clamp' % (tp + j, tp + j))
            for j in range(8):
                a('v_max_f32 v%d, v%d, v%d' % (tp + j, tp + j, rr[j >> 1] + (j & 1)))
            for j in range(4):
                a('v_pk_add_f32 %s, %s, %s' % (vr(tp + 2 * j, 2), vr(tp + 2 * j, 2), sr(SW, 2)))
            for j in range(4):
                a('v_cvt_pk_bf16_f32 v%d, v%d, v%d' % (rr[0] + j, tp + 2 * j, tp + 2 * j + 1))
            a('buffer_store_dwordx4 %s, v5, %s, s%d offen offset:%d sc1' % (vr(rr[0], 4), sr(S_WS, 4), T0, sb * 1024))
        a('s_add_u32 s%d, s%d, 4096' % (T0, T0))
    a.label('k_epiE')
    stamp(a, 21)
    VW2, TA = 84, 88
    a('v_mov_b32 v9, 1')
    if P1ONLY:
        a('s_waitcnt vmcnt(0)')
        a('s_mov_b64 exec, 1')
        a('buffer_store_dword v9, off, %s, s%d offset:%d sc1' % (sr(S_WS, 4), T3, O_F))
        a('s_mov_b64 exec, -1')
        stamp_out(a)
        a('s_endpgm')
        a.label('k_final')
        return
    w2_addr(a, VW2, TA, UB)
    a('v_mov_b32 v9, 1')
    a('s_lshl_b32 s%d, s%d, 17' % (SW, W))
    vm.op('; (h/pq stores)', 'ST')
    winc = ['s_add_u32 s%d, s%d, 32768' % (SW, SW)]
    for i in range(2):
        w2_dma(vm, a, VW2, 4096 * i, 'W%d' % i, winc)
    vm.wait('ST')
    a('s_mov_b64 exec, 1')
    vm.op('buffer_store_dword v9, off, %s, s%d offset:%d sc1' % (sr(S_WS, 4), T3, O_F), 'F')
    a('s_mov_b64 exec, -1')
    stamp(a, 22)
    stamp(a, 57, True)
    for i in range(2, 4):
        w2_dma(vm, a, VW2, 4096 * i, 'W%d' % i, winc)
    PQ, KVF, ZF, KVB, ZB = 96, 160, 16, 32, 48
    ACC2 = 192
    ND = 64
    for r in range(64):
        a('v_mov_b32 v%d, 0' % (ACC2 + r))
    a('v_and_b32 v2, 31, v1')
    a('v_lshlrev_b32 v2, 2, v2')
    a('s_lshl_b32 s%d, s%d, 11' % (T0, RT2))
    a('s_add_u32 s%d, s%d, 0x%x' % (T0, T0, WS_BLK))
    a('s_add_u32 s%d, s%d, 28' % (T1, W))
    a('v_lshrrev_b32 v6, 3, v1')
    a('v_and_b32 v7, 7, v1')
    a('v_lshlrev_b32 v7, 4, v7')
    a('v_lshl_add_u32 v92, v6, 11, v7')
    a('v_bfe_u32 v6, v4, 1, 1')
    a('v_lshlrev_b32 v7, 4, v3')
    a('v_lshl_add_u32 v93, v6, 11, v7')
    a('v_cmp_ne_u32 s[%d:%d], 0, v6' % (SAB, SAB + 1))
    a('s_lshl_b32 s%d, s%d, 14' % (T2, W))
    a('s_add_u32 s%d, s%d, 0x%x' % (T2, T2, WS_BLK))
    a('s_mul_i32 s%d, s%d, 72' % (SA, RT2))
    a('s_lshl_b32 s%d, s%d, 2' % (T3, W))
    a('s_add_u32 s%d, s%d, s%d' % (SA, SA, T3))
    a('s_add_u32 s%d, s%d, 56' % (SA, SA))
    a('s_lshl_b32 s%d, s%d, 12' % (SA, SA))
    poll(a, vm, 'k_pollQ', ['buffer_load_dword v9, v2, %s, s%d offen offset:%d sc1' % (sr(S_WS, 4), T0, O_F)],
         ['v_cmp_ne_u32 vcc, 0, v9', 's_bitcmp1_b32 vcc_lo, s%d' % T1])
    stamp(a, 23)
    for i in range(4):
        for sb in range(4):
            vm.op('buffer_load_dwordx4 %s, v5, %s, s%d offen offset:%d sc1' % (vr(PQ + 16 * i + 4 * sb, 4), sr(S_WS, 4), SA, sb * 1024), 'PQ')
        a('s_add_u32 s%d, s%d, 4096' % (SA, SA))
    g_load(a, vm, GV)
    poll(a, vm, 'k_pollK', ['buffer_load_dwordx4 v[64:67], v92, %s, s%d offen offset:%d sc1' % (sr(S_WS, 4), T2, O_KF)],
         ['v_and_b32 v64, v64, v65', 'v_and_b32 v66, v66, v67', 'v_and_b32 v64, v64, v66',
          'v_cmp_ne_u32 vcc, 0, v64', 's_cmp_eq_u64 vcc, -1'])
    stamp(a, 24)
    for i in range(4):
        vm.op('buffer_load_dwordx4 %s, v5, %s, s%d offen sc1' % (vr(KVF + 8 * i, 4), sr(S_WS, 4), T2), 'K%d' % i)
        vm.op('buffer_load_dwordx4 %s, v5, %s, s%d offen offset:2048 sc1' % (vr(KVF + 8 * i + 4, 4), sr(S_WS, 4), T2), 'K%d' % i)
        vm.op('buffer_load_dwordx4 %s, v93, %s, s%d offen offset:%d sc1' % (vr(ZF + 4 * i, 4), sr(S_WS, 4), T2, O_Z), 'K%d' % i)
        a('s_add_u32 s%d, s%d, 4096' % (T2, T2))
    lg = Cnt(a, 'lgkmcnt', 15)
    WF = 64
    for i in range(4):
        vm.wait('K%d' % i)
        for j in range(4):
            a('v_cvt_pk_bf16_f32 v%d, v%d, v%d' % (KVB + 4 * i + j, KVF + 8 * i + 2 * j, KVF + 8 * i + 2 * j + 1))
        a('v_cvt_pk_bf16_f32 v%d, v%d, v%d' % (ZF + 4 * i, ZF + 4 * i, ZF + 4 * i + 1))
        a('v_cvt_pk_bf16_f32 v%d, v%d, v%d' % (ZF + 4 * i + 1, ZF + 4 * i + 2, ZF + 4 * i + 3))
        for j in range(2):
            a('v_cndmask_b32 v%d, v%d, 0, s[%d:%d]' % (ZB + 4 * i + j, ZF + 4 * i + j, SAB, SAB + 1))
            a('v_cndmask_b32 v%d, 0, v%d, s[%d:%d]' % (ZB + 4 * i + 2 + j, ZF + 4 * i + j, SAB, SAB + 1))
    stamp(a, 25)
    NDR = [160, 172, 16, 180]
    NDR = [160, 172, 16, None]
    NDREG = [(160, 164, 168), (172, 176, 180), (184, 188, 16), (20, 24, 28)]
    for i in range(4):
        for r in w2_reads(TA, WF, 4096 * i):
            lg.op(r, 'R%d' % i)
        for sb in range(4):
            nA, nB, dn = NDREG[sb]
            pq = PQ + 16 * i + 4 * sb
            a(mf(dn, ZB + 4 * i, pq, '0'))
            a(mf16(nA, KVB + 4 * i, pq, '0'))
            a(mf16(nB, KVB + 4 * i + 2, pq + 2, '0'))
        for sb in range(4):
            nA, nB, dn = NDREG[sb]
            a('v_add_f32 v%d, 0x%x, v%d' % (dn, EPS, dn))
            a('v_add_f32 v%d, 0x%x, v%d' % (dn + 2, EPS, dn + 2))
            a('v_rcp_f32 v%d, v%d' % (dn, dn))
            a('v_rcp_f32 v%d, v%d' % (dn + 2, dn + 2))
        for sb in range(4):
            nA, nB, dn = NDREG[sb]
            pq = PQ + 16 * i + 4 * sb
            for j in range(2):
                a('v_pk_mul_f32 %s, %s, %s op_sel_hi:[1,0]' % (vr(nA + 2 * j, 2), vr(nA + 2 * j, 2), vr(dn, 2)))
                a('v_pk_mul_f32 %s, %s, %s op_sel_hi:[1,0]' % (vr(nB + 2 * j, 2), vr(nB + 2 * j, 2), vr(dn + 2, 2)))
            a('v_cvt_pk_bf16_f32 v%d, v%d, v%d' % (pq, nA, nA + 1))
            a('v_cvt_pk_bf16_f32 v%d, v%d, v%d' % (pq + 1, nA + 2, nA + 3))
            a('v_cvt_pk_bf16_f32 v%d, v%d, v%d' % (pq + 2, nB, nB + 1))
            a('v_cvt_pk_bf16_f32 v%d, v%d, v%d' % (pq + 3, nB + 2, nB + 3))
        lg.all()
        for cb in range(4):
            for sb in range(4):
                a(mf(ACC2 + (cb * 4 + sb) * 4, WF + 4 * cb, PQ + 16 * i + 4 * sb))
    stamp(a, 36)
    part_write(a, ACC2, [0, 4096, 8192, 12288])
    a('s_waitcnt lgkmcnt(0)')
    stamp(a, 37)
    a('s_barrier')
    stamp(a, 38)
    a.label('k_final')
    final(a, GV)
    stamp_out(a)


def kd(a, name, vgpr, sgpr):
    a.raw('.p2align 6')
    a.raw('.amdhsa_kernel %s' % name)
    a.raw('  .amdhsa_next_free_vgpr %d' % vgpr)
    a.raw('  .amdhsa_next_free_sgpr %d' % sgpr)
    a.raw('  .amdhsa_accum_offset %d' % ((vgpr + 3) // 4 * 4))
    a.raw('  .amdhsa_group_segment_fixed_size 0')
    a.raw('  .amdhsa_kernarg_size 88')
    a.raw('  .amdhsa_user_sgpr_count 2')
    a.raw('  .amdhsa_user_sgpr_kernarg_segment_ptr 1')
    a.raw('  .amdhsa_system_sgpr_workgroup_id_x 1')
    a.raw('.end_amdhsa_kernel')


def main(out):
    a = Asm()
    hdr = open('cdna_kernels/%s.s.ref' % NAME).read().split('\n')
    for line in hdr:
        if line.startswith(';') and '@launch' not in line and 'Override launch' not in line and 'grid=ceil' not in line:
            a.raw(line)
    a.raw('; @launch grid=(256,1,1) block=(512,1,1) lds=%d' % LDS)
    a.raw('.amdgcn_target "amdgcn-amd-amdhsa--gfx950"')
    a.raw('.text')
    gen(a)
    n = a.fix(verbose=bool(env('VERB', 0)))
    a.raw('.section .rodata,"a"')
    kd(a, NAME + '_kernel', 256, 100)
    open(out, 'w').write(a.text())
    print('pads inserted:', n, 'lines', len(a.l))


if __name__ == '__main__':
    main(sys.argv[1])
```

```python
import sys, os
from asmlib import Asm, Cnt, vr, sr

NAME = 'gated_mix__linear_attn_block__glu_gated_bilinear__prompt'


def env(k, d):
    return type(d)(os.environ.get(k, d))


DIAG = env('DIAG', 0)
SCHED = env('SCHED', 'b')
PRE = env('PRE', 8)
P1ONLY = env('P1ONLY', 0)
CPF = env('CPF', 1)
W2T = env('W2T', '135')
SLEEP = env('SLEEP', 2)
ROTJ = env('ROTJ', 1)

WS_A2 = 0
WS_BLK = 0x00A00000
WS_G = 0x00A10000
WS_STAMP = 0x00C00000
WS_SIZE = 0x01000000
O_Z, O_KF, O_F = 1024, 1152, 1280

LOG2E = 0x3FB8AA3B
NLOG2E = 0xBFB8AA3B
EPS = 0x358637BD
ONES = 0x3F803F80

SLOT = 53248
SLOTB = [57344, 110592, 4096]
WREG = 32768
TG = 5120
LDS = 163840
E_U = [0, 4096, 8192]
L_U = [49152, 53248, 57344]
ATT = 98304

P_X, P_QKV, P_WO, P_BX, P_WG, P_WU, P_WD, P_GW, P_OUT, P_DBG, P_WS = 4, 6, 8, 10, 12, 14, 16, 18, 20, 22, 24
S_X, S_G, S_U, S_KV, S_WS, S_T, S_GW, S_W2, S_OUT, S_DBG = 28, 32, 36, 40, 44, 48, 52, 56, 60, 64
RT, CT, WV, RT2, CT2, RB, GOFF, UOFF = 68, 69, 70, 71, 72, 73, 74, 75
T0, T1, T2, T3 = 76, 77, 78, 79
SX, SG, SKV, SGS, XL, WL, STO, STS = 80, 81, 82, 83, 84, 85, 86, 87
DELTA, CNT, SLOTI, L2E = 80, 81, 82, 83
SW, SWB, SWE, SA, SAB, SAE, UB, MASK = 88, 89, 90, 91, 92, 93, 94, 95
PC = 26
GF = 27
TW, TO = 10, 11
STV = 14
POLLS = 0x8000


def srd(a, d, ptr, nbytes):
    a('s_mov_b32 s%d, s%d' % (d, ptr))
    a('s_and_b32 s%d, s%d, 0xffff' % (d + 1, ptr + 1))
    if isinstance(nbytes, str):
        a('s_mov_b32 s%d, %s' % (d + 2, nbytes))
    else:
        a('s_mov_b32 s%d, 0x%x' % (d + 2, nbytes))
    a('s_mov_b32 s%d, 0x00020000' % (d + 3))


def mf(d, x, y, c=None):
    cc = vr(d, 4) if c is None else c
    return 'v_mfma_f32_16x16x32_bf16 %s, %s, %s, %s' % (vr(d, 4), vr(x, 4), vr(y, 4), cc)


def mf16(d, x, y, c=None):
    cc = vr(d, 4) if c is None else c
    return 'v_mfma_f32_16x16x16_bf16 %s, %s, %s, %s' % (vr(d, 4), vr(x, 2), vr(y, 2), cc)


def stamp(a, idx, real=False):
    if not DIAG:
        return
    a('%s s[96:97]' % ('s_memrealtime' if real else 's_memtime'))
    a('s_waitcnt lgkmcnt(0)')
    a('v_writelane_b32 v%d, s96, %s' % (STV, idx))


def stamp_out(a):
    if not DIAG:
        return
    a('s_waitcnt vmcnt(0)')
    stamp(a, 61)
    stamp(a, 63, True)
    a('v_lshrrev_b32 v2, 6, v0')
    a('v_readfirstlane_b32 s99, v2')
    a('s_lshl_b32 s98, s2, 3')
    a('s_add_u32 s98, s98, s99')
    a('s_lshl_b32 s98, s98, 8')
    a('s_add_u32 s98, s98, 0x%x' % WS_STAMP)
    a('v_and_b32 v2, 63, v0')
    a('v_lshlrev_b32 v2, 2, v2')
    a('s_nop 4')
    a('buffer_store_dword v%d, v2, %s, s98 offen' % (STV, sr(S_WS, 4)))


def poll(a, vm, name, loads, test):
    a('s_mov_b32 s%d, 0x%x' % (PC, POLLS))
    a.label(name)
    for l in loads:
        vm.op(l, 'poll')
    vm.all()
    a(test)
    a('s_cbranch_scc1 %s_ok' % name)
    a('s_sleep %d' % SLEEP)
    a('s_sub_u32 s%d, s%d, 1' % (PC, PC))
    a('s_cbranch_scc0 %s' % name)
    a.label(name + '_ok')


def w2_addr(a, VW2, TA, base_s):
    a('v_lshrrev_b32 v6, 3, v1')
    a('s_lshl_b32 s%d, s%d, 7' % (T0, CT2))
    a('v_lshl_add_u32 v6, v6, 10, s%d' % T0)
    a('v_bfe_u32 v7, v1, 1, 2')
    a('v_xor_b32 v7, v7, v3')
    a('v_lshl_add_u32 v6, v7, 5, v6')
    a('v_and_b32 v7, 1, v1')
    a('v_lshl_add_u32 v%d, v7, 4, v6' % VW2)
    for j in range(1, 4):
        a('v_add_u32 v%d, %d, v%d' % (VW2 + j, j * 7168, VW2))
    a('v_lshrrev_b32 v6, 2, v1')
    a('v_lshl_add_u32 v6, v6, 7, s%d' % base_s)
    a('v_and_b32 v7, 3, v1')
    a('v_lshl_add_u32 v6, v7, 3, v6')
    a('v_bfe_u32 v7, v1, 3, 2')
    for cb in range(4):
        a('v_xor_b32 v8, %d, v7' % cb)
        a('v_lshl_add_u32 v%d, v8, 5, v6' % (TA + cb))


def w2_dma(vm, a, VW2, unit, tag, step_inc):
    a('s_add_u32 m0, s%d, %d' % (UB, unit))
    a('s_nop 0')
    for j in range(4):
        vm.op('buffer_load_dwordx4 v%d, %s, s%d offen offset:%d lds' % (VW2 + j, sr(S_W2, 4), SW, j * 1024), tag)
    a(step_inc)


def w2_reads(TA, dst, unit):
    r = []
    for cb in range(4):
        r.append('ds_read_b64_tr_b16 %s, v%d offset:%d' % (vr(dst + 4 * cb, 2), TA + cb, unit))
        r.append('ds_read_b64_tr_b16 %s, v%d offset:%d' % (vr(dst + 4 * cb + 2, 2), TA + cb, unit + 2048))
    return r


def g_load(a, vm, GV):
    a('s_lshl_b32 s%d, s%d, 3' % (T0, RT2))
    a('s_add_u32 s%d, s%d, s%d' % (T0, T0, WV))
    a('s_lshl_b32 s%d, s%d, 5' % (T0, T0))
    a('s_add_u32 s%d, s%d, 0x%x' % (T0, T0, WS_G))
    a('v_lshrrev_b32 v6, 3, v1')
    a('v_lshlrev_b32 v6, 2, v6')
    vm.op('buffer_load_dword v%d, v6, %s, s%d offen sc1' % (GV, sr(S_WS, 4), T0), 'G')


def part_write(a, ACC2, units):
    a('v_and_b32 v6, 7, v1')
    a('v_xor_b32 v6, v6, v3')
    a('v_lshl_add_u32 v7, v4, 8, s%d' % UB)
    a('v_lshl_add_u32 v8, v6, 4, v7')
    a('v_xor_b32 v9, 64, v8')
    for cb in range(4):
        for sb in range(4):
            a('ds_write_b128 v%d, %s offset:%d' % (8 + (cb & 1), vr(ACC2 + (cb * 4 + sb) * 4, 4), units[sb] + (cb >> 1) * 128))


def final(a, GV):
    R = 64
    for p in range(8):
        for hf in range(2):
            off = 12288 * p if p < 4 else 16384 * (p - 4)
            a('ds_read_b128 %s, v%d offset:%d' % (vr(R + (p * 2 + hf) * 4, 4), (10 if p < 4 else 12) + hf, off))
    a('s_lshl_b32 s%d, s%d, 3' % (T0, RT2))
    a('s_add_u32 s%d, s%d, s%d' % (T0, T0, WV))
    a('s_lshl_b32 s%d, s%d, 13' % (T0, T0))
    a('s_lshl_b32 s%d, s%d, 7' % (T1, CT2))
    a('s_add_u32 s%d, s%d, s%d' % (T0, T0, T1))
    a('v_lshrrev_b32 v6, 3, v1')
    a('v_and_b32 v7, 7, v1')
    a('v_lshlrev_b32 v7, 4, v7')
    a('v_lshl_add_u32 v6, v6, 10, v7')
    a('s_waitcnt vmcnt(0)')
    a('v_sub_f32 v8, 1.0, v%d' % GV)
    a('v_cvt_pk_bf16_f32 v8, v8, v8')
    a('v_lshlrev_b32 v8, 16, v8')
    for grp in range(2):
        b = R + grp * 32
        for p in range(1, 4):
            a('s_waitcnt lgkmcnt(%d)' % (14 - grp * 8 - p * 2))
            for j in range(4):
                a('v_pk_add_f32 %s, %s, %s' % (vr(b + 2 * j, 2), vr(b + 2 * j, 2), vr(b + p * 8 + 2 * j, 2)))
        if grp == 0:
            for j in range(8):
                a('v_mul_f32 v%d, v%d, v8' % (b + j, b + j))
    for j in range(8):
        a('v_fma_f32 v%d, v%d, v%d, v%d' % (R + j, R + 32 + j, GV, R + j))
    for j in range(4):
        a('v_cvt_pk_bf16_f32 v%d, v%d, v%d' % (16 + j, R + 2 * j, R + 2 * j + 1))
    a('buffer_store_dwordx4 v[16:19], v6, %s, s%d offen' % (sr(S_OUT, 4), T0))


def final_addr(a):
    a('s_lshr_b32 s%d, s%d, 1' % (T0, WV))
    a('s_lshl_b32 s%d, s%d, 12' % (T1, T0))
    a('s_add_u32 s%d, s%d, %d' % (T2, T1, ATT))
    a('s_cmp_eq_u32 s%d, 3' % T0)
    a('s_cselect_b32 s%d, %d, s%d' % (T1, L_U[0], T1))
    a('s_and_b32 s%d, s%d, 1' % (T0, WV))
    a('s_lshl_b32 s%d, s%d, 11' % (T0, T0))
    a('v_lshrrev_b32 v6, 3, v1')
    a('v_and_b32 v7, 7, v1')
    a('v_lshlrev_b32 v7, 1, v7')
    a('v_xor_b32 v7, v7, v6')
    a('v_lshl_add_u32 v6, v6, 8, s%d' % T0)
    a('v_lshl_add_u32 v6, v7, 4, v6')
    a('v_xor_b32 v7, 16, v6')
    a('v_add_u32 v10, s%d, v6' % T1)
    a('v_add_u32 v11, s%d, v7' % T1)
    a('v_add_u32 v12, s%d, v6' % T2)
    a('v_add_u32 v13, s%d, v7' % T2)


def gen(a):
    K = NAME + '_kernel'
    a.raw('.globl %s' % K)
    a.raw('.p2align 12')
    a.raw('.type %s,@function' % K)
    a.label(K)
    a('s_cmp_ge_u32 s2, 256')
    a('s_cbranch_scc1 k_end')
    if DIAG:
        a('v_mov_b32 v%d, 0' % STV)
    stamp(a, 0)
    stamp(a, 62, True)
    a('s_load_dwordx16 s[4:19], s[0:1], 0')
    a('s_load_dwordx4 s[20:23], s[0:1], 64')
    a('s_load_dwordx2 s[24:25], s[0:1], 80')
    if CPF:
        a('s_getpc_b64 s[98:99]')
        a.label('k_pc')
        a('v_xor_b32 v2, 0x100, v0')
        a('v_lshlrev_b32 v2, 7, v2')
        a('v_min_u32 v2, k_end-k_pc, v2')
        a('global_load_dword v94, v2, s[98:99]')
    a('v_lshrrev_b32 v2, 6, v0')
    a('v_and_b32 v1, 63, v0')
    a('v_readfirstlane_b32 s%d, v2' % WV)
    a('s_and_b32 s%d, s2, 7' % T0)
    a('s_lshr_b32 s%d, s2, 3' % T1)
    a('s_and_b32 s%d, s%d, 1' % (T2, T0))
    a('s_lshl_b32 s%d, s%d, 2' % (T2, T2))
    a('s_and_b32 s%d, s%d, 3' % (T3, T1))
    a('s_add_u32 s%d, s%d, s%d' % (RT, T2, T3))
    a('s_lshl_b32 s%d, s%d, 2' % (RT2, T0))
    a('s_add_u32 s%d, s%d, s%d' % (RT2, RT2, T3))
    a('s_lshr_b32 s%d, s%d, 1' % (T2, T0))
    a('s_lshl_b32 s%d, s%d, 3' % (T2, T2))
    a('s_lshr_b32 s%d, s%d, 2' % (CT2, T1))
    a('s_add_u32 s%d, s%d, s%d' % (CT, T2, CT2))
    a('v_lshrrev_b32 v3, 4, v1')
    a('v_and_b32 v4, 15, v1')
    a('v_lshlrev_b32 v5, 4, v1')
    a('s_cmp_ge_u32 s%d, 4' % WV)
    a('s_cbranch_scc1 k_C')
    gen_loader(a)
    gen_compute(a)
    a.label('k_end')
    a('s_endpgm')


def gen_loader(a):
    vm = Cnt(a, 'vmcnt', 63)
    lg = Cnt(a, 'lgkmcnt', 15)
    VX, VG, VU, VKV, VT = 32, 40, 42, 44, 45
    TD = 46
    DBV = 54
    VW2, TA, GV = 56, 60, 15
    a('s_setprio 3')
    a('s_cmp_ge_u32 s%d, 28' % CT)
    a('s_cselect_b32 s%d, 6, 7' % RB)
    a('s_lshl_b32 s%d, s%d, 9' % (RB, RB))
    a('s_lshl_b32 s%d, s%d, 7' % (T0, CT))
    a('s_sub_u32 s%d, s%d, 28' % (T1, CT))
    a('s_lshl_b32 s%d, s%d, 8' % (T1, T1))
    a('s_add_u32 s%d, s%d, 128' % (T2, T1))
    a('s_cmp_ge_u32 s%d, 28' % CT)
    a('s_cselect_b32 s%d, s%d, s%d' % (GOFF, T1, T0))
    a('s_cselect_b32 s%d, s%d, s%d' % (UOFF, T2, T0))
    a('v_lshrrev_b32 v2, 5, v1')
    a('s_cmp_eq_u32 s%d, 0' % WV)
    a('s_cbranch_scc1 k_tx')
    a('s_cmp_eq_u32 s%d, 3' % WV)
    a('s_cbranch_scc1 k_tkv')
    a('s_and_b32 s%d, s%d, 3' % (T0, RT))
    a('s_lshl_b32 s%d, s%d, 4' % (T0, T0))
    a('v_lshl_add_u32 v%d, v2, 6, s%d' % (VT, T0))
    a('v_add_u32 v%d, v%d, v4' % (VT, VT))
    a('v_mul_lo_u32 v%d, v%d, s%d' % (VT, VT, RB))
    a('s_lshl_b32 s%d, s%d, 7' % (STS, RB))
    a('s_cmp_eq_u32 s%d, 1' % WV)
    a('s_cselect_b32 s%d, s%d, s%d' % (STO, GOFF, UOFF))
    a('s_waitcnt lgkmcnt(0)')
    a('s_cselect_b64 s[%d:%d], s[%d:%d], s[%d:%d]' % (S_T, S_T + 1, P_WG, P_WG + 1, P_WU, P_WU + 1))
    a('s_cmp_ge_u32 s%d, 28' % CT)
    a('s_cselect_b64 s[%d:%d], s[%d:%d], s[%d:%d]' % (S_T, S_T + 1, P_QKV, P_QKV + 1, S_T, S_T + 1))
    a('s_lshl_b32 s%d, s%d, 9' % (S_T + 2, RB))
    a('s_branch k_tgo')
    a.label('k_tx')
    a('s_lshl_b32 s%d, s%d, 3' % (T0, RT))
    a('s_and_b32 s%d, s%d, 7' % (T1, CT))
    a('s_add_u32 s%d, s%d, s%d' % (T0, T0, T1))
    a('s_lshl_b32 s%d, s%d, 15' % (STO, T0))
    a('v_and_b32 v6, 31, v1')
    a('v_lshlrev_b32 v%d, 10, v6' % VT)
    a('v_lshl_add_u32 v%d, v2, 7, v%d' % (VT, VT))
    a('s_mov_b32 s%d, 256' % STS)
    a('s_mov_b32 s%d, 0x%x' % (S_T + 2, 2048 * 1024))
    a('s_waitcnt lgkmcnt(0)')
    a('s_mov_b64 s[%d:%d], s[%d:%d]' % (S_T, S_T + 1, P_X, P_X + 1))
    a('s_branch k_tgo')
    a.label('k_tkv')
    a('s_and_b32 s%d, s%d, 3' % (T0, RT))
    a('s_lshl_b32 s%d, s%d, 2' % (T0, T0))
    a('s_and_b32 s%d, s%d, 3' % (T2, CT))
    a('s_add_u32 s%d, s%d, s%d' % (T0, T0, T2))
    a('s_lshl_b32 s%d, s%d, 2' % (T0, T0))
    a('v_lshl_add_u32 v%d, v2, 6, s%d' % (VT, T0))
    a('v_and_b32 v6, 3, v4')
    a('v_add_u32 v%d, v%d, v6' % (VT, VT))
    a('v_mul_u32_u24 v%d, 3072, v%d' % (VT, VT))
    a('v_bfe_u32 v6, v4, 2, 1')
    a('v_lshl_add_u32 v%d, v6, 10, v%d' % (VT, VT))
    a('s_lshr_b32 s%d, s%d, 2' % (T2, CT))
    a('s_lshl_b32 s%d, s%d, 7' % (T2, T2))
    a('s_add_u32 s%d, s%d, 1024' % (STO, T2))
    a('s_mov_b32 s%d, 0x%x' % (STS, 128 * 3072))
    a('s_mov_b32 s%d, 0x%x' % (S_T + 2, 512 * 3072))
    a('s_waitcnt lgkmcnt(0)')
    a('s_mov_b64 s[%d:%d], s[%d:%d]' % (S_T, S_T + 1, P_QKV, P_QKV + 1))
    a.label('k_tgo')
    a('s_and_b32 s%d, s%d, 0xffff' % (S_T + 1, S_T + 1))
    a('s_mov_b32 s%d, 0x00020000' % (S_T + 3))
    tcount = [0]

    def touch():
        p = tcount[0]
        tcount[0] += 1
        vm.op('buffer_load_dword v%d, v%d, %s, s%d offen' % (TD + p, VT, sr(S_T, 4), STO), 'T%d' % p)
        a('s_add_u32 s%d, s%d, s%d' % (STO, STO, STS))

    NT0 = {'a': 2, 'n': 0, 'b': 1, 'c': 4}[SCHED[0]]
    for _ in range(NT0):
        touch()
    a('v_lshrrev_b32 v6, 3, v1')
    a('v_and_b32 v7, 7, v1')
    a('v_xor_b32 v17, v7, v3')
    a('v_xor_b32 v18, 4, v17')
    a('s_lshl_b32 s%d, s%d, 8' % (T0, RT))
    a('s_lshl_b32 s%d, s%d, 6' % (T1, WV))
    a('s_add_u32 s%d, s%d, s%d' % (T0, T0, T1))
    a('s_lshl_b32 s%d, s%d, 10' % (T0, T0))
    a('v_lshl_add_u32 v19, v6, 10, s%d' % T0)
    a('v_lshl_add_u32 v20, v17, 4, v19')
    a('v_lshl_add_u32 v21, v18, 4, v19')
    for jj in range(8):
        a('v_add_u32 v%d, 0x%x, v%d' % (VX + jj, jj * 8192 - (jj & 3) * 1024, 20 + (jj & 1)))
    a('s_lshl_b32 s%d, s%d, 4' % (T0, WV))
    a('v_add_u32 v19, s%d, v6' % T0)
    a('v_mul_lo_u32 v19, v19, s%d' % RB)
    a('v_and_b32 v20, 1, v7')
    a('v_lshl_add_u32 v19, v20, 4, v19')
    a('v_lshrrev_b32 v20, 1, v7')
    a('v_and_b32 v21, 1, v3')
    a('v_xor_b32 v20, v20, v21')
    a('v_xor_b32 v21, 2, v20')
    a('v_lshl_add_u32 v20, v20, 5, v19')
    a('v_lshl_add_u32 v21, v21, 5, v19')
    a('s_lshl_b32 s%d, s%d, 3' % (T1, RB))
    a('s_sub_u32 s%d, s%d, 1024' % (T1, T1))
    a('v_add_u32 v21, s%d, v21' % T1)
    a('v_add_u32 v%d, s%d, v20' % (VG, GOFF))
    a('v_add_u32 v%d, s%d, v21' % (VG + 1, GOFF))
    a('v_add_u32 v%d, s%d, v20' % (VU, UOFF))
    a('v_add_u32 v%d, s%d, v21' % (VU + 1, UOFF))
    a('v_lshrrev_b32 v19, 2, v1')
    a('v_add_u32 v19, s%d, v19' % T0)
    a('v_mul_u32_u24 v19, 3072, v19')
    a('v_bfe_u32 v20, v1, 1, 1')
    a('v_xor_b32 v20, v20, v2')
    a('v_lshl_add_u32 v19, v20, 10, v19')
    a('v_and_b32 v20, 1, v1')
    a('v_lshl_add_u32 v19, v20, 4, v19')
    a('s_lshl_b32 s%d, s%d, 5' % (T1, CT))
    a('s_add_u32 s%d, s%d, 1024' % (T1, T1))
    a('v_add_u32 v%d, s%d, v19' % (VKV, T1))
    a('s_lshl_b32 s%d, s%d, 13' % (XL, WV))
    a('s_mul_i32 s%d, s%d, %d' % (WL, WV, TG))
    a('s_add_u32 s%d, s%d, %d' % (WL, WL, WREG))
    a('s_mov_b32 s%d, 0' % SX)
    a('s_mov_b32 s%d, 0' % SG)
    a('s_mov_b32 s%d, 0' % SKV)
    a('s_lshl_b32 s%d, s%d, 6' % (SGS, RB))
    srd(a, S_X, P_X, 2048 * 1024)
    a('s_cmp_ge_u32 s%d, 28' % CT)
    a('s_cselect_b64 s[%d:%d], s[%d:%d], s[%d:%d]' % (P_WG, P_WG + 1, P_QKV, P_QKV + 1, P_WG, P_WG + 1))
    a('s_cselect_b64 s[%d:%d], s[%d:%d], s[%d:%d]' % (P_WU, P_WU + 1, P_QKV, P_QKV + 1, P_WU, P_WU + 1))
    a('s_lshl_b32 s%d, s%d, 9' % (T0, RB))
    srd(a, S_G, P_WG, 's%d' % T0)
    srd(a, S_U, P_WU, 's%d' % T0)
    srd(a, S_KV, P_QKV, 512 * 3072)
    srd(a, S_GW, P_GW, 1024)

    def dma(stage):
        sb = SLOTB[stage % 3]
        r = []
        for half in range(2):
            r.append('s_add_u32 m0, s%d, %d' % (XL, sb + half * 4096))
            r.append('s_nop 0')
            for q in range(4):
                r.append('buffer_load_dwordx4 v%d, %s, s%d offen offset:%d lds' % (VX + half * 4 + q, sr(S_X, 4), SX, q * 1024))
        r.append('s_add_u32 m0, s%d, %d' % (WL, sb))
        r.append('s_add_u32 s%d, s%d, 128' % (SX, SX))
        for q in range(2):
            r.append('buffer_load_dwordx4 v%d, %s, s%d offen offset:%d lds' % (VG + q, sr(S_G, 4), SG, q * 1024))
        r.append('s_add_u32 m0, s%d, %d' % (WL, sb + 2048))
        r.append('s_nop 0')
        for q in range(2):
            r.append('buffer_load_dwordx4 v%d, %s, s%d offen offset:%d lds' % (VU + q, sr(S_U, 4), SG, q * 1024))
        r.append('s_add_u32 m0, s%d, %d' % (WL, sb + 4096))
        r.append('s_add_u32 s%d, s%d, s%d' % (SG, SG, SGS))
        r.append('buffer_load_dwordx4 v%d, %s, s%d offen lds' % (VKV, sr(S_KV, 4), SKV))
        r.append('s_add_u32 s%d, s%d, %d' % (SKV, SKV, 64 * 3072))
        return [(x, stage) for x in r]

    def emit(lst, n=None):
        c = 0
        while lst and (n is None or c < n):
            t, st = lst.pop(0)
            if t.startswith('buffer_load'):
                vm.op(t, 'D%d' % st)
                c += 1
            else:
                a(t)

    if NT0:
        vm.wait('T0')
    stamp(a, 1)
    emit(dma(0))
    a('s_lshl_b32 m0, s%d, 10' % WV)
    a('s_nop 0')
    vm.op('buffer_load_dwordx4 v5, %s, 0 offen lds' % sr(S_GW, 4), 'D0')
    d1 = dma(1)
    emit(d1, PRE)
    GWR, GX, GA, GAD = 160, 16, 20, 22
    a('s_mul_i32 s%d, s%d, 37' % (T0, CT))
    a('s_lshr_b32 s%d, s%d, 8' % (T0, T0))
    a('s_mul_i32 s%d, s%d, 7' % (T1, T0))
    a('s_sub_u32 s%d, s%d, 24' % (T2, CT))
    a('s_cmp_ge_u32 s%d, 28' % CT)
    a('s_cselect_b32 s%d, s%d, s%d' % (T0, T2, T0))
    a('s_cselect_b32 s%d, s%d, s%d' % (T1, CT, T1))
    a('s_cmp_eq_u32 s%d, s%d' % (T1, CT))
    a('s_cselect_b32 s%d, s%d, -1' % (GF, T0))
    a('s_lshl_b32 s%d, s%d, 10' % (T1, T0))
    a('s_add_u32 s%d, s%d, s%d' % (T1, T1, XL))
    for k in range(3):
        a('s_add_u32 s%d, s%d, %d' % (T2, T1, SLOTB[k]))
        a('v_add_u32 v%d, s%d, v5' % (GAD + k, T2))
    a('s_and_b32 s%d, s%d, 1' % (T0, T0))
    a('s_lshl_b32 s%d, s%d, 2' % (T0, T0))
    a('v_xor_b32 v%d, s%d, v17' % (GAD + 3, T0))
    a('s_lshl_b32 s%d, s%d, 10' % (T0, WV))
    a('v_lshl_add_u32 v%d, v%d, 4, s%d' % (GAD + 3, GAD + 3, T0))
    a('v_mov_b32 v%d, 0' % GA)
    a('v_mov_b32 v%d, 0' % (GA + 1))
    VTW, VTO = 26, 27
    a('v_min_u32 v%d, 6, v6' % VTW)
    a('v_lshlrev_b32 v%d, 10, v%d' % (VTW, VTW))
    a('v_lshl_add_u32 v%d, v7, 7, v%d' % (VTW, VTW))
    a('v_and_b32 v%d, 31, v1' % VTO)
    a('v_lshlrev_b32 v%d, 7, v%d' % (VTO, VTO))
    a('s_lshr_b32 s%d, s2, 3' % T0)
    a('s_lshl_b32 s%d, s%d, 2' % (T0, T0))
    a('s_add_u32 s%d, s%d, s%d' % (T0, T0, WV))
    a('s_lshl_b32 s%d, s%d, 12' % (TO, T0))
    a('s_mul_i32 s%d, s%d, %d' % (TW, T0, 7 * 1024))
    a('s_bitcmp1_b32 s2, 0')
    a('s_cselect_b32 s%d, %d, 0' % (T0, 896 * 1024))
    a('s_add_u32 s%d, s%d, s%d' % (TW, TW, T0))
    srd(a, S_GW, P_WO, 512 * 1024)

    def w2touch(t):
        if t < 2:
            vm.op('buffer_load_dword v%d, v%d, %s, s%d offen' % (28 + t, VTW, sr(S_W2, 4), TW), 'TW')
            a('s_add_u32 s%d, s%d, %d' % (T0, TW, 896 * 1024))
            a('s_sub_u32 s%d, s%d, %d' % (T1, TW, 896 * 1024))
            a('s_cselect_b32 s%d, s%d, s%d' % (TW, T0, T1))
        else:
            vm.op('buffer_load_dword v%d, v%d, %s, s%d offen' % (28 + t, VTO, sr(S_GW, 4), TO), 'TW')

    def gate(stages):
        lab = 'k_ng%d' % stages[0]
        a('s_cmp_lt_i32 s%d, 0' % GF)
        a('s_cbranch_scc1 %s' % lab)
        if stages[0] == 0:
            for n in range(8):
                a('ds_read_b128 %s, v%d offset:%d' % (vr(GWR + 4 * n, 4), GAD + 3, n * 128))
        for st in stages:
            if st == 7:
                a('s_waitcnt vmcnt(0)')
            a('ds_read_b128 %s, v%d' % (vr(GX, 4), GAD + st % 3))
            a('s_waitcnt lgkmcnt(0)')
            for n in range(4):
                a('v_dot2_f32_bf16 v%d, v%d, v%d, v%d' % (GA + (n & 1), GX + n, GWR + 4 * st + n, GA + (n & 1)))
        if stages[-1] == 7:
            a('s_lshl_b32 s%d, s%d, 2' % (T2, RT))
            a('s_add_u32 s%d, s%d, s%d' % (T2, T2, WV))
            a('s_lshl_b32 s%d, s%d, 3' % (T2, T2))
            a('s_add_u32 s%d, s%d, s%d' % (T2, T2, GF))
            a('s_lshl_b32 s%d, s%d, 5' % (T2, T2))
            a('s_add_u32 s%d, s%d, 0x%x' % (T2, T2, WS_G))
            a('v_lshrrev_b32 v17, 3, v1')
            a('v_lshlrev_b32 v17, 2, v17')
            a('v_add_f32 v16, v%d, v%d' % (GA, GA + 1))
            a('v_add_f32_dpp v16, v16, v16 quad_perm:[1,0,3,2] row_mask:0xf bank_mask:0xf')
            a('v_add_f32_dpp v16, v16, v16 quad_perm:[2,3,0,1] row_mask:0xf bank_mask:0xf')
            a('v_add_f32_dpp v16, v16, v16 row_half_mirror row_mask:0xf bank_mask:0xf')
            a('v_cvt_pk_bf16_f32 v16, v16, v16')
            a('v_lshlrev_b32 v16, 16, v16')
            a('v_mul_f32 v16, 0x%x, v16' % NLOG2E)
            a('v_exp_f32 v16, v16')
            a('v_add_f32 v16, 1.0, v16')
            a('v_rcp_f32 v16, v16')
            a('v_cvt_pk_bf16_f32 v16, v16, v16')
            a('v_lshlrev_b32 v16, 16, v16')
            a('buffer_store_dword v16, v17, %s, s%d offen sc1' % (sr(S_WS, 4), T2))
        a.label(lab)
    srd(a, S_WS, P_WS, WS_SIZE)
    srd(a, S_W2, P_WD, 1792 * 1024)
    srd(a, S_OUT, P_OUT, 2048 * 1024)
    srd(a, S_DBG, P_DBG, 256)
    a('s_mul_i32 s%d, s%d, 12288' % (UB, WV))
    w2_addr(a, VW2, TA, UB)
    final_addr(a)
    a('s_and_b32 s%d, s%d, %d' % (T0, RT2, 3 if ROTJ else 0))
    a('s_lshl_b32 s%d, s%d, 1' % (T0, T0))
    a('s_add_u32 s%d, s%d, s%d' % (T0, T0, CT2))
    a('s_mul_i32 s%d, s%d, 7' % (T0, T0))
    a('s_lshr_b32 s%d, s%d, 2' % (T0, T0))
    a('s_sub_u32 s%d, s%d, 14' % (T1, T0))
    a('s_cselect_b32 s%d, s%d, s%d' % (T0, T0, T1))
    a('s_mul_i32 s%d, s%d, 14' % (T1, WV))
    a('s_lshl_b32 s%d, s%d, 15' % (SWB, T1))
    a('s_add_u32 s%d, s%d, %d' % (SWE, SWB, 14 * 32768))
    a('s_lshl_b32 s%d, s%d, 15' % (T2, T0))
    a('s_add_u32 s%d, s%d, s%d' % (SW, SWB, T2))
    a('s_mul_i32 s%d, s%d, 72' % (T2, RT2))
    a('s_add_u32 s%d, s%d, s%d' % (T2, T2, T1))
    a('s_lshl_b32 s%d, s%d, 12' % (SAB, T2))
    a('s_add_u32 s%d, s%d, %d' % (SAE, SAB, 14 * 4096))
    a('s_lshl_b32 s%d, s%d, 12' % (T2, T0))
    a('s_add_u32 s%d, s%d, s%d' % (SA, SAB, T2))
    a('s_mul_i32 s%d, s%d, 7' % (T0, WV))
    a('s_lshl_b32 s%d, 0x7f, s%d' % (MASK, T0))
    a('v_and_b32 v2, 31, v1')
    a('v_lshlrev_b32 v2, 2, v2')
    winc = ['s_add_u32 s%d, s%d, 32768' % (SW, SW), 's_cmp_eq_u32 s%d, s%d' % (SW, SWE),
            's_cselect_b32 s%d, s%d, s%d' % (SW, SWB, SW)]
    ainc = ['s_add_u32 s%d, s%d, 4096' % (SA, SA), 's_cmp_eq_u32 s%d, s%d' % (SA, SAE),
            's_cselect_b32 s%d, s%d, s%d' % (SA, SAB, SA)]
    stamp(a, 2)
    vm.wait('D0')
    a('s_barrier')
    stamp(a, 3)
    stamp(a, 45, True)
    emit(d1)
    WR = 64
    ACC2 = 192

    def wd(i, unit):
        w2_dma(vm, a, VW2, unit, 'W%d' % i, winc)

    def wr(i, unit):
        vm.wait('W%d' % i)
        for r in w2_reads(TA, WR + 16 * i, unit):
            lg.op(r, 'R%d' % i)

    for s in range(8):
        if NT0 and tcount[0] < 4 and s % 2 == 0:
            touch()
        if s + 2 < 8:
            emit(dma(s + 2))
        for t, ch in enumerate(W2T):
            if int(ch) == s and not P1ONLY:
                w2touch(t)
        if s < 6:
            gate([s])
        elif s == 6:
            gate([6, 7])
        if s == 3:
            vm.op('buffer_load_dword v%d, v2, %s, 0 offen sc1' % (DBV, sr(S_DBG, 4)), 'I')
        if s == 5:
            for r in range(64):
                a('v_mov_b32 v%d, 0' % (ACC2 + r))
            vm.wait('I')
            a('v_cmp_ne_u32 vcc, 0, v%d' % DBV)
            a('s_cmp_eq_u64 vcc, -1')
            a('s_cbranch_scc1 k_init_ok')
            a('s_mov_b32 s%d, 0x%x' % (PC, POLLS))
            a.label('k_init')
            a('buffer_load_dword v%d, v2, %s, 0 offen sc1' % (DBV, sr(S_DBG, 4)))
            a('s_waitcnt vmcnt(0)')
            a('v_cmp_ne_u32 vcc, 0, v%d' % DBV)
            a('s_cmp_eq_u64 vcc, -1')
            a('s_cbranch_scc1 k_init_ok')
            a('s_sleep 1')
            a('s_sub_u32 s%d, s%d, 1' % (PC, PC))
            a('s_cbranch_scc0 k_init')
            a.label('k_init_ok')
        if s == 6 and not P1ONLY:
            for i in range(3):
                wd(i, E_U[i])
        if s == 7 and not P1ONLY:
            wd(3, L_U[0])
            wd(4, L_U[1])
            for i in range(3):
                wr(i, E_U[i])
                lg.all()
                wd(5 + i, E_U[i])
        stamp(a, 5 + 3 * s)
        if s + 1 < 8:
            vm.wait('D%d' % (s + 1))
        stamp(a, 6 + 3 * s)
        a('s_barrier')
        stamp(a, 7 + 3 * s)
        stamp(a, 46 + s, True)
    a('v_lshlrev_b32 v6, 2, v1')
    a('v_add_u32 v7, s%d, v6' % UB)
    a('v_and_b32 v8, 12, v6')
    a('v_add_u32 v8, s%d, v8' % UB)
    for w in range(4):
        lg.op('ds_read_b32 v%d, v7 offset:%d' % (16 + w, L_U[2] + w * 256), 'kv')
    for w in range(4):
        lg.op('ds_read_b32 v%d, v8 offset:%d' % (20 + w, L_U[2] + 1024 + w * 256), 'kv')
    a('s_lshl_b32 s%d, s%d, 11' % (T0, CT))
    a('s_add_u32 s%d, s%d, 0x%x' % (T0, T0, WS_BLK))
    a('s_lshl_b32 s%d, s%d, 8' % (T1, WV))
    a('s_add_u32 s%d, s%d, s%d' % (T1, T1, T0))
    a('s_lshl_b32 s%d, s%d, 4' % (T2, WV))
    a('s_add_u32 s%d, s%d, s%d' % (T2, T2, T0))
    a('s_lshl_b32 s%d, s%d, 2' % (T3, RT))
    a('s_add_u32 s%d, s%d, s%d' % (T3, T3, WV))
    a('s_lshl_b32 s%d, s%d, 2' % (T3, T3))
    a('s_add_u32 s%d, s%d, s%d' % (T3, T3, T0))
    lg.all()
    a('v_add_f32 v16, v16, v17')
    a('v_add_f32 v18, v18, v19')
    a('v_add_f32 v20, v20, v21')
    a('v_add_f32 v22, v22, v23')
    a('v_add_f32 v16, v16, v18')
    a('v_add_f32 v20, v20, v22')
    a('v_mov_b32 v9, 1')
    vm.op('buffer_atomic_add_f32 v16, v6, %s, s%d offen' % (sr(S_WS, 4), T1), 'AT')
    a('s_mov_b64 exec, 15')
    vm.op('buffer_atomic_add_f32 v20, v6, %s, s%d offen offset:%d' % (sr(S_WS, 4), T2, O_Z), 'AT')
    a('s_mov_b64 exec, -1')
    stamp(a, 30)

    def kflag():
        vm.wait('AT')
        a('s_mov_b64 exec, 1')
        vm.op('buffer_store_dword v9, off, %s, s%d offset:%d sc1' % (sr(S_WS, 4), T3, O_KF), 'KF')
        a('s_mov_b64 exec, -1')

    if P1ONLY:
        kflag()
        stamp_out(a)
        a('s_endpgm')
        return
    wd(10, L_U[2]) if False else None
    for i in (3, 4):
        wr(i, L_U[i - 3])
        lg.all()
        wd(5 + i, L_U[i - 3])
    wd(10, L_U[2])
    kflag()
    stamp(a, 31)
    for i in (5, 6, 7):
        wr(i, E_U[i - 5])
        lg.all()
        wd(6 + i, E_U[i - 5])
    stamp(a, 32)
    UNIT = {8: L_U[0], 9: L_U[1], 10: L_U[2], 11: E_U[0], 12: E_U[1], 13: E_U[2]}
    a('s_lshl_b32 s%d, s%d, 11' % (T0, RT2))
    a('s_add_u32 s%d, s%d, 0x%x' % (T0, T0, WS_BLK))
    poll(a, vm, 'k_pollL', ['buffer_load_dword v9, v2, %s, s%d offen offset:%d sc1' % (sr(S_WS, 4), T0, O_F)],
         ['v_cmp_ne_u32 vcc, 0, v9', 's_and_b32 s%d, vcc_lo, s%d' % (T1, MASK), 's_cmp_eq_u32 s%d, s%d' % (T1, MASK)])
    stamp(a, 33)
    stamp(a, 56, True)
    TA2 = 6
    for j in range(4):
        a('v_mov_b32 v%d, v%d' % (TA2 + j, TA + j)) if False else None
    free = [16, 32]
    extra = 48
    ag = {}
    nxt = [0]

    def aload():
        if nxt[0] < 14 and free:
            i = nxt[0]; nxt[0] += 1
            g = free.pop(0); ag[i] = g
            for sb in range(4):
                vm.op('buffer_load_dwordx4 %s, v5, %s, s%d offen offset:%d sc1' % (vr(g + 4 * sb, 4), sr(S_WS, 4), SA, sb * 1024), 'A%d' % i)
            a(ainc)
            return True
        return False

    aload(); aload()
    g_load(a, vm, GV)
    wg = {i: WR + 16 * i for i in range(8)}
    for i in range(14):
        pre = []
        if i + 1 >= 8 and i + 1 < 14:
            g = free.pop(0); wg[i + 1] = g
            vm.wait('W%d' % (i + 1))
            pre = w2_reads(TA, g, UNIT[i + 1])
        vm.wait('A%d' % i)
        if i >= 8:
            lg.wait('R%d' % i)
        k = 0
        for cb in range(4):
            for sb in range(4):
                a(mf(ACC2 + (cb * 4 + sb) * 4, wg[i] + 4 * cb, ag[i] + 4 * sb))
                if k < len(pre):
                    lg.op(pre[k], 'R%d' % (i + 1)); k += 1
        free.append(ag[i]); free.append(wg[i])
        while aload():
            pass
        if i in (3, 7):
            stamp(a, 34 + i // 4)
    stamp(a, 36)
    part_write(a, ACC2, [E_U[0], E_U[1], E_U[2], L_U[0]])
    a('s_waitcnt lgkmcnt(0)')
    stamp(a, 37)
    a('s_barrier')
    stamp(a, 38)
    a('s_branch k_final')


def gen_compute(a):
    a.label('k_C')
    vm = Cnt(a, 'vmcnt', 63)
    XS = [32, 48]
    WRING = 64
    XA, WA, KA = 84, 86, 90
    NL = 92
    KW = 93
    ACC = 96
    GV = 15
    W = 27

    def acc(cb, sb):
        return ACC + (cb * 4 + sb) * 4

    a('s_sub_u32 s%d, s%d, 4' % (W, WV))
    a('s_waitcnt lgkmcnt(0)')
    srd(a, S_WS, P_WS, WS_SIZE)
    srd(a, S_DBG, P_DBG, 256)
    a('s_cmp_ge_u32 s2, 32')
    a('s_cbranch_scc1 k_noinit')
    a('s_cmp_lg_u32 s%d, 3' % W)
    a('s_cbranch_scc1 k_noinit')
    for j in range(4):
        a('v_mov_b32 v%d, 0' % (16 + j))
    a('s_lshl_b32 s%d, s2, 11' % T0)
    a('s_add_u32 s%d, s%d, 0x%x' % (T0, T0, WS_BLK))
    a('buffer_store_dwordx4 v[16:19], v5, %s, s%d offen sc1' % (sr(S_WS, 4), T0))
    a('buffer_store_dwordx4 v[16:19], v5, %s, s%d offen offset:1024 sc1' % (sr(S_WS, 4), T0))
    a('s_lshl_b32 s%d, s2, 2' % T0)
    a('v_mov_b32 v20, 1')
    a('s_waitcnt vmcnt(0)')
    a('s_mov_b64 exec, 1')
    a('buffer_store_dword v20, off, %s, s%d sc1' % (sr(S_DBG, 4), T0))
    a('s_mov_b64 exec, -1')
    a.label('k_noinit')
    a('s_lshl_b32 s%d, s%d, 13' % (T0, W))
    a('s_add_u32 s%d, s%d, %d' % (T0, T0, SLOTB[0]))
    a('v_lshl_add_u32 v16, v4, 7, s%d' % T0)
    a('v_bfe_u32 v17, v4, 1, 3')
    a('v_xor_b32 v17, v17, v3')
    a('v_lshl_add_u32 v%d, v17, 4, v16' % XA)
    a('v_xor_b32 v%d, 64, v%d' % (XA + 1, XA))
    a('v_lshrrev_b32 v16, 1, v3')
    a('v_mul_u32_u24 v16, %d, v16' % TG)
    a('v_and_b32 v17, 3, v4')
    a('v_lshl_add_u32 v16, v17, 3, v16')
    a('v_add_u32 v16, %d, v16' % (SLOTB[0] + WREG))
    a('v_and_b32 v17, 1, v3')
    a('v_lshrrev_b32 v18, 2, v4')
    a('v_lshl_add_u32 v18, v17, 3, v18')
    a('v_lshl_add_u32 v19, v18, 6, v16')
    a('v_lshl_add_u32 v%d, v17, 5, v19' % KA)
    a('v_add_u32 v%d, 4096, v%d' % (KA, KA))
    a('v_xor_b32 v%d, 32, v%d' % (KA + 1, KA))
    a('v_lshl_add_u32 v19, v18, 7, v16')
    a('v_bfe_u32 v18, v1, 3, 2')
    for cb in range(4):
        a('v_xor_b32 v20, %d, v18' % cb)
        a('v_lshl_add_u32 v%d, v20, 5, v19' % (WA + cb))
    a('v_mul_u32_u24 v16, 12288, v3')
    a('v_lshl_add_u32 v16, v4, 4, v16')
    a('s_lshl_b32 s%d, s%d, 8' % (T0, W))
    a('s_add_u32 s%d, s%d, %d' % (T0, T0, L_U[2]))
    a('v_add_u32 v%d, s%d, v16' % (KW, T0))
    a('v_mov_b32 v%d, 0x%x' % (NL, NLOG2E))
    a('s_mov_b32 s%d, 0x%x' % (L2E, LOG2E))
    a('s_mov_b32 s%d, 0' % SLOTI)
    a('s_mov_b32 s%d, 0' % CNT)
    srd(a, S_W2, P_WO, 512 * 1024)
    srd(a, S_OUT, P_OUT, 2048 * 1024)
    a('s_lshl_b32 s%d, s%d, 14' % (UB, W))
    a('s_add_u32 s%d, s%d, %d' % (UB, UB, ATT))
    final_addr(a)
    a('s_cmp_ge_u32 s%d, 28' % CT)
    a('s_cselect_b32 s%d, 1.0, 0' % MASK)
    for r in range(64, 160):
        a('v_mov_b32 v%d, s%d' % (ACC + r, MASK))
    for j in range(4):
        a('v_mov_b32 v%d, 0x%x' % (6 + j, ONES))
    for r in range(16):
        a('v_mov_b32 v%d, 1.0' % (ACC + r))
    for r in range(16, 32):
        a('v_mov_b32 v%d, 0' % (ACC + r))
    for r in range(32, 64):
        a('v_mov_b32 v%d, s%d' % (ACC + r, MASK))

    def wread(f, cb, kk):
        d = WRING + 4 * (f % 5)
        if cb < 2:
            ad, off, st = KA + cb, kk * 2 * TG, 256
        else:
            ad, off, st = WA + (cb - 2) // 2, kk * 2 * TG + ((cb - 2) & 1) * 2048, 512
        return ['ds_read_b64_tr_b16 %s, v%d offset:%d' % (vr(d, 2), ad, off),
                'ds_read_b64_tr_b16 %s, v%d offset:%d' % (vr(d + 2, 2), ad, off + st)]

    def xread(kk, sb):
        return 'ds_read_b128 %s, v%d offset:%d' % (vr(XS[kk] + 4 * sb, 4), XA + kk, sb * 2048)

    def mma(f, cb, kk, sb):
        w = WRING + 4 * (f % 5)
        x = XS[kk] + 4 * sb
        return mf(acc(cb, sb), x, w) if cb < 2 else mf(acc(cb, sb), w, x)

    NORM = [(cb, kk) for kk in range(2) for cb in range(10)]

    def head_ops():
        r = []
        w0, w1, w2 = wread(0, 0, 0), wread(1, 1, 0), wread(2, 2, 0)
        r += [(0, w0[0], 'W0'), (0, w0[1], 'W0'), (1, xread(0, 0), 'X00'), (2, xread(0, 1), 'X01'), (3, xread(0, 2), 'X02'),
              (4, xread(0, 3), 'X03'), (5, w1[0], 'W1'), (6, w1[1], 'W1'), (8, w2[0], 'W2'), (9, w2[1], 'W2')]
        return r

    def stage(lg, order, gaps, nread=20):
        seen = set()
        for f, (cb, kk) in enumerate(order):
            if f + 3 < nread:
                c2, k2 = order[f + 3]
                w = wread(f + 3, c2, k2)
                gaps.setdefault(4 * f, []).insert(0, (w[0], 'W%d' % (f + 3)))
                gaps.setdefault(4 * f + 1, []).insert(0, (w[1], 'W%d' % (f + 3)))
        for f, (cb, kk) in enumerate(order):
            for sb in range(4):
                if sb == 0:
                    lg.wait('W%d' % f)
                if (kk, sb) not in seen:
                    seen.add((kk, sb))
                    lg.wait('X%d%d' % (kk, sb))
                a(mma(f, cb, kk, sb))
                for t, tag in gaps.get(4 * f + sb, []):
                    if t == 'BAR':
                        lg.all()
                        stamp(a, 'm0')
                        if DIAG:
                            a('s_add_u32 m0, m0, 1')
                        a('s_barrier')
                        stamp(a, 'm0')
                        if DIAG:
                            a('s_add_u32 m0, m0, 1')
                    elif tag:
                        lg.op(t, tag)
                    else:
                        a(t)

    stamp(a, 1)
    a('s_barrier')
    stamp(a, 2)
    stamp(a, 58, True)
    if DIAG:
        a('s_mov_b32 m0, 3')
    lg = Cnt(a, 'lgkmcnt', 15)
    for _, t, tag in head_ops():
        lg.op(t, tag)
    a.raw('.p2align 3')
    a.label('k_loop')
    gaps = {}

    def add(g, t, tag=None):
        gaps.setdefault(g, []).append((t, tag))

    for sb in range(4):
        add(4 * (2 + sb) + 2, xread(1, sb), 'X1%d' % sb)
    add(3, 's_add_u32 s%d, s%d, 1' % (SLOTI, SLOTI))
    add(3, 's_cmp_eq_u32 s%d, 2' % SLOTI)
    add(3, 's_cselect_b32 s%d, 0x%x, %d' % (DELTA, (-2 * SLOT) & 0xffffffff, SLOT)) if False else None
    add(6, 's_mov_b32 s%d, %d' % (DELTA, SLOT))
    add(6, 's_cselect_b32 s%d, 0x%x, s%d' % (DELTA, (-2 * SLOT) & 0xffffffff, DELTA))
    add(7, 's_cmp_eq_u32 s%d, 3' % SLOTI)
    add(7, 's_cselect_b32 s%d, 0, s%d' % (SLOTI, SLOTI))
    for f, r in ((6, XA), (7, XA + 1), (9, KA), (10, KA + 1), (11, WA), (13, WA + 1), (15, WA + 2), (16, WA + 3)):
        add(4 * f + 2, 'v_add_u32 v%d, s%d, v%d' % (r, DELTA, r))
    add(4 * 16 + 3, 'BAR')
    for g, t, tag in head_ops():
        add(4 * 17 + g, t, tag)
    add(4 * 19 + 2, 's_add_u32 s%d, s%d, 1' % (CNT, CNT))
    add(4 * 19 + 2, 's_cmp_lt_u32 s%d, 7' % CNT)
    stage(lg, NORM, gaps)
    a('s_cbranch_scc1 k_loop')
    LAST = [(0, 0), (1, 0), (2, 0), (0, 1), (1, 1), (3, 0), (4, 0), (5, 0), (2, 1), (3, 1), (4, 1), (5, 1),
            (6, 0), (7, 0), (8, 0), (9, 0), (6, 1), (7, 1), (8, 1), (9, 1)]
    gaps = {}
    for sb in range(4):
        add(2 + sb + (sb >> 1) * 2, xread(1, sb), 'X1%d' % sb)
    fl = []
    TP = 16
    for g in range(4):
        for r in range(4):
            fl.append(('v_fma_f32 v%d, v%d, s%d, v%d' % (TP + 4 * g + r, ACC + 4 * g + r, L2E, NL), 1))
    for g in range(4):
        for r in range(4):
            fl.append(('v_exp_f32_e64 v%d, v%d clamp' % (TP + 4 * g + r, TP + 4 * g + r), 2))
        if g >= 1:
            for r in range(4):
                fl.append(('v_max_f32 v%d, v%d, v%d' % (TP + 4 * (g - 1) + r, TP + 4 * (g - 1) + r, ACC + 4 * (g - 1) + r), 1))
    for r in range(4):
        fl.append(('v_max_f32 v%d, v%d, v%d' % (TP + 12 + r, TP + 12 + r, ACC + 12 + r), 1))
    for r in range(16):
        fl.append(('v_add_f32 v%d, 0x%x, v%d' % (TP + r, EPS, TP + r), 1))
    for j in range(8):
        fl.append(('v_cvt_pk_bf16_f32 v%d, v%d, v%d' % (ACC + j, TP + 2 * j, TP + 2 * j + 1), 1))
    for j in range(8):
        fl.append(('v_cvt_pk_bf16_f32 v%d, v%d, v%d' % (ACC + 8 + j, ACC + 16 + 2 * j, ACC + 17 + 2 * j), 1))
    g = 4 * 4 + 3
    while fl:
        used = 1 if (g % 4) < 2 else 0
        while fl and used + fl[0][1] <= 3:
            t, c = fl.pop(0)
            add(g, t)
            used += c
        g += 1
    g += 1
    add(g, mf(TP + 4, ACC, ACC + 8, '0'))
    add(g + 1, mf(TP + 8, ACC, 6, '0'))
    add(g + 2, mf(TP + 4, ACC + 4, ACC + 12))
    add(g + 3, mf(TP + 8, ACC + 4, 6))
    g += 8
    add(g, 'ds_write_b128 v%d, %s' % (KW, vr(TP + 4, 4)), 'KW')
    add(g + 1, 'ds_write_b128 v%d, %s offset:1024' % (KW, vr(TP + 8, 4)), 'KW')
    gb = max(g + 3, 4 * 16 + 3)
    assert gb < 80, gb
    add(gb, 'BAR')
    stage(lg, LAST, gaps)
    stamp(a, 20)
    stamp(a, 59, True)
    a('s_lshl_b32 s%d, s%d, 2' % (T0, RT))
    a('s_add_u32 s%d, s%d, s%d' % (T0, T0, W))
    a('s_lshl_b32 s%d, s%d, 11' % (T3, T0))
    a('s_lshl_b32 s%d, s%d, 2' % (T2, CT))
    a('s_add_u32 s%d, s%d, s%d' % (T3, T3, T2))
    a('s_add_u32 s%d, s%d, 0x%x' % (T3, T3, WS_BLK))
    a('s_mul_i32 s%d, s%d, %d' % (T0, T0, 72 * 4096))
    a('s_cmp_ge_u32 s%d, 28' % CT)
    a('s_cbranch_scc1 k_epiQ')
    a('s_lshl_b32 s%d, s%d, 13' % (T1, CT))
    a('s_add_u32 s%d, s%d, s%d' % (T0, T0, T1))
    a('s_add_u32 s%d, s%d, 4096' % (T1, T0))
    for hf in range(2):
        for sb in range(4):
            gA, uA, gB, uB = (acc(2 + 4 * hf + k, sb) for k in range(4))
            for j in range(2):
                a('v_pk_mul_f32 %s, %s, %s' % (vr(gA + 2 * j, 2), vr(gA + 2 * j, 2), vr(uA + 2 * j, 2)))
                a('v_pk_mul_f32 %s, %s, %s' % (vr(gB + 2 * j, 2), vr(gB + 2 * j, 2), vr(uB + 2 * j, 2)))
            a('v_cvt_pk_bf16_f32 v%d, v%d, v%d' % (gA, gA, gA + 1))
            a('v_cvt_pk_bf16_f32 v%d, v%d, v%d' % (gA + 1, gA + 2, gA + 3))
            a('v_cvt_pk_bf16_f32 v%d, v%d, v%d' % (gA + 2, gB, gB + 1))
            a('v_cvt_pk_bf16_f32 v%d, v%d, v%d' % (gA + 3, gB + 2, gB + 3))
            a('buffer_store_dwordx4 %s, v5, %s, s%d offen offset:%d sc1' % (vr(gA, 4), sr(S_WS, 4), T0 + hf, sb * 1024))
    a('s_branch k_epiE')
    a.label('k_epiQ')
    a('s_sub_u32 s%d, s%d, 14' % (T1, CT))
    a('s_lshl_b32 s%d, s%d, 14' % (T1, T1))
    a('s_add_u32 s%d, s%d, s%d' % (T0, T0, T1))
    a('s_mov_b32 s%d, 0x%x' % (SW, EPS))
    a('s_mov_b32 s%d, 0x%x' % (SW + 1, EPS))
    a('s_mov_b32 s%d, 0x%x' % (SAB, LOG2E))
    a('s_mov_b32 s%d, 0x%x' % (SAB + 1, LOG2E))
    a('v_mov_b32 v%d, v%d' % (NL + 1, NL))
    pairs = [(2, 4), (6, 8), (3, 5), (7, 9)]
    for i, (cA, cB) in enumerate(pairs):
        for sb in range(4):
            rr = [acc(cA, sb), acc(cA, sb) + 2, acc(cB, sb), acc(cB, sb) + 2]
            tp = 16 + (sb & 1) * 8
            for j, r in enumerate(rr):
                a('v_pk_fma_f32 %s, %s, %s, %s' % (vr(tp + 2 * j, 2), vr(r, 2), sr(SAB, 2), vr(NL, 2)))
            for j in range(8):
                a('v_exp_f32_e64 v%d, v%d clamp' % (tp + j, tp + j))
            for j in range(8):
                a('v_max_f32 v%d, v%d, v%d' % (tp + j, tp + j, rr[j >> 1] + (j & 1)))
            for j in range(4):
                a('v_pk_add_f32 %s, %s, %s' % (vr(tp + 2 * j, 2), vr(tp + 2 * j, 2), sr(SW, 2)))
            for j in range(4):
                a('v_cvt_pk_bf16_f32 v%d, v%d, v%d' % (rr[0] + j, tp + 2 * j, tp + 2 * j + 1))
            a('buffer_store_dwordx4 %s, v5, %s, s%d offen offset:%d sc1' % (vr(rr[0], 4), sr(S_WS, 4), T0, sb * 1024))
        a('s_add_u32 s%d, s%d, 4096' % (T0, T0))
    a.label('k_epiE')
    stamp(a, 21)
    VW2, TA = 84, 88
    a('v_mov_b32 v9, 1')
    if P1ONLY:
        a('s_waitcnt vmcnt(0)')
        a('s_mov_b64 exec, 1')
        a('buffer_store_dword v9, off, %s, s%d offset:%d sc1' % (sr(S_WS, 4), T3, O_F))
        a('s_mov_b64 exec, -1')
        stamp_out(a)
        a('s_endpgm')
        a.label('k_final')
        return
    w2_addr(a, VW2, TA, UB)
    a('v_mov_b32 v9, 1')
    a('s_lshl_b32 s%d, s%d, 17' % (SW, W))
    vm.op('; (h/pq stores)', 'ST')
    winc = ['s_add_u32 s%d, s%d, 32768' % (SW, SW)]
    for i in range(2):
        w2_dma(vm, a, VW2, 4096 * i, 'W%d' % i, winc)
    vm.wait('ST')
    a('s_mov_b64 exec, 1')
    vm.op('buffer_store_dword v9, off, %s, s%d offset:%d sc1' % (sr(S_WS, 4), T3, O_F), 'F')
    a('s_mov_b64 exec, -1')
    stamp(a, 22)
    stamp(a, 57, True)
    for i in range(2, 4):
        w2_dma(vm, a, VW2, 4096 * i, 'W%d' % i, winc)
    PQ, KVF, ZF, KVB, ZB = 96, 160, 16, 32, 48
    ACC2 = 192
    ND = 64
    for r in range(64):
        a('v_mov_b32 v%d, 0' % (ACC2 + r))
    a('v_and_b32 v2, 31, v1')
    a('v_lshlrev_b32 v2, 2, v2')
    a('s_lshl_b32 s%d, s%d, 11' % (T0, RT2))
    a('s_add_u32 s%d, s%d, 0x%x' % (T0, T0, WS_BLK))
    a('s_add_u32 s%d, s%d, 28' % (T1, W))
    a('v_lshrrev_b32 v6, 3, v1')
    a('v_and_b32 v7, 7, v1')
    a('v_lshlrev_b32 v7, 4, v7')
    a('v_lshl_add_u32 v92, v6, 11, v7')
    a('v_bfe_u32 v6, v4, 1, 1')
    a('v_lshlrev_b32 v7, 4, v3')
    a('v_lshl_add_u32 v93, v6, 11, v7')
    a('v_cmp_ne_u32 s[%d:%d], 0, v6' % (SAB, SAB + 1))
    a('s_lshl_b32 s%d, s%d, 14' % (T2, W))
    a('s_add_u32 s%d, s%d, 0x%x' % (T2, T2, WS_BLK))
    a('s_mul_i32 s%d, s%d, 72' % (SA, RT2))
    a('s_lshl_b32 s%d, s%d, 2' % (T3, W))
    a('s_add_u32 s%d, s%d, s%d' % (SA, SA, T3))
    a('s_add_u32 s%d, s%d, 56' % (SA, SA))
    a('s_lshl_b32 s%d, s%d, 12' % (SA, SA))
    poll(a, vm, 'k_pollQ', ['buffer_load_dword v9, v2, %s, s%d offen offset:%d sc1' % (sr(S_WS, 4), T0, O_F)],
         ['v_cmp_ne_u32 vcc, 0, v9', 's_bitcmp1_b32 vcc_lo, s%d' % T1])
    stamp(a, 23)
    for i in range(4):
        for sb in range(4):
            vm.op('buffer_load_dwordx4 %s, v5, %s, s%d offen offset:%d sc1' % (vr(PQ + 16 * i + 4 * sb, 4), sr(S_WS, 4), SA, sb * 1024), 'PQ')
        a('s_add_u32 s%d, s%d, 4096' % (SA, SA))
    g_load(a, vm, GV)
    poll(a, vm, 'k_pollK', ['buffer_load_dwordx4 v[64:67], v92, %s, s%d offen offset:%d sc1' % (sr(S_WS, 4), T2, O_KF)],
         ['v_and_b32 v64, v64, v65', 'v_and_b32 v66, v66, v67', 'v_and_b32 v64, v64, v66',
          'v_cmp_ne_u32 vcc, 0, v64', 's_cmp_eq_u64 vcc, -1'])
    stamp(a, 24)
    for i in range(4):
        vm.op('buffer_load_dwordx4 %s, v5, %s, s%d offen sc1' % (vr(KVF + 8 * i, 4), sr(S_WS, 4), T2), 'K%d' % i)
        vm.op('buffer_load_dwordx4 %s, v5, %s, s%d offen offset:2048 sc1' % (vr(KVF + 8 * i + 4, 4), sr(S_WS, 4), T2), 'K%d' % i)
        vm.op('buffer_load_dwordx4 %s, v93, %s, s%d offen offset:%d sc1' % (vr(ZF + 4 * i, 4), sr(S_WS, 4), T2, O_Z), 'K%d' % i)
        a('s_add_u32 s%d, s%d, 4096' % (T2, T2))
    lg = Cnt(a, 'lgkmcnt', 15)
    WF = 64
    for i in range(4):
        vm.wait('K%d' % i)
        for j in range(4):
            a('v_cvt_pk_bf16_f32 v%d, v%d, v%d' % (KVB + 4 * i + j, KVF + 8 * i + 2 * j, KVF + 8 * i + 2 * j + 1))
        a('v_cvt_pk_bf16_f32 v%d, v%d, v%d' % (ZF + 4 * i, ZF + 4 * i, ZF + 4 * i + 1))
        a('v_cvt_pk_bf16_f32 v%d, v%d, v%d' % (ZF + 4 * i + 1, ZF + 4 * i + 2, ZF + 4 * i + 3))
        for j in range(2):
            a('v_cndmask_b32 v%d, v%d, 0, s[%d:%d]' % (ZB + 4 * i + j, ZF + 4 * i + j, SAB, SAB + 1))
            a('v_cndmask_b32 v%d, 0, v%d, s[%d:%d]' % (ZB + 4 * i + 2 + j, ZF + 4 * i + j, SAB, SAB + 1))
    stamp(a, 25)
    NDR = [160, 172, 16, 180]
    NDR = [160, 172, 16, None]
    NDREG = [(160, 164, 168), (172, 176, 180), (184, 188, 16), (20, 24, 28)]
    for i in range(4):
        for r in w2_reads(TA, WF, 4096 * i):
            lg.op(r, 'R%d' % i)
        for sb in range(4):
            nA, nB, dn = NDREG[sb]
            pq = PQ + 16 * i + 4 * sb
            a(mf(dn, ZB + 4 * i, pq, '0'))
            a(mf16(nA, KVB + 4 * i, pq, '0'))
            a(mf16(nB, KVB + 4 * i + 2, pq + 2, '0'))
        for sb in range(4):
            nA, nB, dn = NDREG[sb]
            a('v_add_f32 v%d, 0x%x, v%d' % (dn, EPS, dn))
            a('v_add_f32 v%d, 0x%x, v%d' % (dn + 2, EPS, dn + 2))
            a('v_rcp_f32 v%d, v%d' % (dn, dn))
            a('v_rcp_f32 v%d, v%d' % (dn + 2, dn + 2))
        for sb in range(4):
            nA, nB, dn = NDREG[sb]
            pq = PQ + 16 * i + 4 * sb
            for j in range(2):
                a('v_pk_mul_f32 %s, %s, %s op_sel_hi:[1,0]' % (vr(nA + 2 * j, 2), vr(nA + 2 * j, 2), vr(dn, 2)))
                a('v_pk_mul_f32 %s, %s, %s op_sel_hi:[1,0]' % (vr(nB + 2 * j, 2), vr(nB + 2 * j, 2), vr(dn + 2, 2)))
            a('v_cvt_pk_bf16_f32 v%d, v%d, v%d' % (pq, nA, nA + 1))
            a('v_cvt_pk_bf16_f32 v%d, v%d, v%d' % (pq + 1, nA + 2, nA + 3))
            a('v_cvt_pk_bf16_f32 v%d, v%d, v%d' % (pq + 2, nB, nB + 1))
            a('v_cvt_pk_bf16_f32 v%d, v%d, v%d' % (pq + 3, nB + 2, nB + 3))
        lg.all()
        for cb in range(4):
            for sb in range(4):
                a(mf(ACC2 + (cb * 4 + sb) * 4, WF + 4 * cb, PQ + 16 * i + 4 * sb))
    stamp(a, 36)
    part_write(a, ACC2, [0, 4096, 8192, 12288])
    a('s_waitcnt lgkmcnt(0)')
    stamp(a, 37)
    a('s_barrier')
    stamp(a, 38)
    a.label('k_final')
    final(a, GV)
    stamp_out(a)


def kd(a, name, vgpr, sgpr):
    a.raw('.p2align 6')
    a.raw('.amdhsa_kernel %s' % name)
    a.raw('  .amdhsa_next_free_vgpr %d' % vgpr)
    a.raw('  .amdhsa_next_free_sgpr %d' % sgpr)
    a.raw('  .amdhsa_accum_offset %d' % ((vgpr + 3) // 4 * 4))
    a.raw('  .amdhsa_group_segment_fixed_size 0')
    a.raw('  .amdhsa_kernarg_size 88')
    a.raw('  .amdhsa_user_sgpr_count 2')
    a.raw('  .amdhsa_user_sgpr_kernarg_segment_ptr 1')
    a.raw('  .amdhsa_system_sgpr_workgroup_id_x 1')
    a.raw('.end_amdhsa_kernel')


def main(out):
    a = Asm()
    hdr = open('cdna_kernels/%s.s.ref' % NAME).read().split('\n')
    for line in hdr:
        if line.startswith(';') and '@launch' not in line and 'Override launch' not in line and 'grid=ceil' not in line:
            a.raw(line)
    a.raw('; @launch grid=(256,1,1) block=(512,1,1) lds=%d' % LDS)
    a.raw('.amdgcn_target "amdgcn-amd-amdhsa--gfx950"')
    a.raw('.text')
    gen(a)
    n = a.fix(verbose=bool(env('VERB', 0)))
    a.raw('.section .rodata,"a"')
    kd(a, NAME + '_kernel', 256, 100)
    open(out, 'w').write(a.text())
    print('pads inserted:', n, 'lines', len(a.l))


if __name__ == '__main__':
    main(sys.argv[1])
```

```python
import sys, os
from asmlib import Asm, Cnt, vr, sr

NAME = 'gated_mix__linear_attn_block__glu_gated_bilinear__prompt'


def env(k, d):
    return type(d)(os.environ.get(k, d))


DIAG = env('DIAG', 0)
SCHED = env('SCHED', 'b')
PRE = env('PRE', 8)
P1ONLY = env('P1ONLY', 0)
CPF = env('CPF', 1)
W2T = env('W2T', '')
SPF = env('SPF', 1)
PRIO = env('PRIO', 1)
B9 = env('B9', 0)
ROT = env('ROT', '00')
NOGATE = env('NOGATE', 0)
KI = 3
SLEEP = env('SLEEP', 2)
ROTJ = env('ROTJ', 1)
DBGST = env('DBGST', 0)
DO = ' offset:128' if DBGST else ''
OUTM = env('OUTM', '')

WS_A2 = 0
WS_BLK = 0x00A00000
WS_G = 0x00A10000
WS_STAMP = 0x00C00000
WS_SIZE = 0x01000000
O_Z, O_KF, O_F = 1024, 1152, 1280

LOG2E = 0x3FB8AA3B
NLOG2E = 0xBFB8AA3B
EPS = 0x358637BD
ONES = 0x3F803F80

SLOT = 53248
SLOTB = [57344, 110592, 4096]
WREG = 32768
TG = 5120
LDS = 163840
E_U = [0, 4096, 8192]
L_U = [49152, 53248, 57344]
ATT = 98304

P_X, P_QKV, P_WO, P_BX, P_WG, P_WU, P_WD, P_GW, P_OUT, P_DBG, P_WS = 4, 6, 8, 10, 12, 14, 16, 18, 20, 22, 24
S_X, S_G, S_U, S_KV, S_WS, S_T, S_GW, S_W2, S_OUT, S_DBG = 28, 32, 36, 40, 44, 48, 52, 56, 60, 64
RT, CT, WV, RT2, CT2, RB, GOFF, UOFF = 68, 69, 70, 71, 72, 73, 74, 75
T0, T1, T2, T3 = 76, 77, 78, 79
SX, SG, SKV, SGS, XL, WL, STO, STS = 80, 81, 82, 83, 84, 85, 86, 87
DELTA, CNT, SLOTI, L2E = 80, 81, 82, 83
SW, SWB, SWE, SA, SAB, SAE, UB, MASK = 88, 89, 90, 91, 92, 93, 94, 95
PC = 26
GF = 27
TW, TO = 10, 11
STV = 14
POLLS = 0x8000


def srd(a, d, ptr, nbytes):
    a('s_mov_b32 s%d, s%d' % (d, ptr))
    a('s_and_b32 s%d, s%d, 0xffff' % (d + 1, ptr + 1))
    if isinstance(nbytes, str):
        a('s_mov_b32 s%d, %s' % (d + 2, nbytes))
    else:
        a('s_mov_b32 s%d, 0x%x' % (d + 2, nbytes))
    a('s_mov_b32 s%d, 0x00020000' % (d + 3))


def mf(d, x, y, c=None):
    cc = vr(d, 4) if c is None else c
    return 'v_mfma_f32_16x16x32_bf16 %s, %s, %s, %s' % (vr(d, 4), vr(x, 4), vr(y, 4), cc)


def mf16(d, x, y, c=None):
    cc = vr(d, 4) if c is None else c
    return 'v_mfma_f32_16x16x16_bf16 %s, %s, %s, %s' % (vr(d, 4), vr(x, 2), vr(y, 2), cc)


def stamp(a, idx, real=False):
    if not DIAG:
        return
    a('%s s[96:97]' % ('s_memrealtime' if real else 's_memtime'))
    a('s_waitcnt lgkmcnt(0)')
    a('v_writelane_b32 v%d, s96, %s' % (STV, idx))


def stamp_out(a):
    if not DIAG:
        return
    a('s_waitcnt vmcnt(0)')
    stamp(a, 61)
    stamp(a, 63, True)
    a('v_lshrrev_b32 v2, 6, v0')
    a('v_readfirstlane_b32 s99, v2')
    a('s_lshl_b32 s98, s2, 3')
    a('s_add_u32 s98, s98, s99')
    a('s_lshl_b32 s98, s98, 8')
    a('s_add_u32 s98, s98, 0x%x' % WS_STAMP)
    a('v_and_b32 v2, 63, v0')
    a('v_lshlrev_b32 v2, 2, v2')
    a('s_nop 4')
    a('buffer_store_dword v%d, v2, %s, s98 offen' % (STV, sr(S_WS, 4)))
    if DBGST:
        a('v_readlane_b32 s98, v%d, 62' % STV)
        a('s_not_b32 s98, s98')
        a('v_writelane_b32 v%d, s98, 60' % STV)
        a('v_readlane_b32 s98, v%d, 45' % STV)
        a('v_writelane_b32 v%d, s98, 54' % STV)
        a('v_readlane_b32 s98, v%d, 63' % STV)
        a('s_not_b32 s98, s98')
        a('v_writelane_b32 v%d, s98, 55' % STV)
        a('v_subrev_u32 v2, 192, v2')
        a('s_mov_b32 exec_lo, 0')
        a('s_mov_b32 exec_hi, 0xffff0000')
        a('buffer_atomic_umax v%d, v2, %s, 0 offen sc1' % (STV, sr(S_DBG, 4)))


def poll(a, vm, name, loads, test):
    a('s_mov_b32 s%d, 0x%x' % (PC, POLLS))
    a.label(name)
    for l in loads:
        vm.op(l, 'poll')
    vm.all()
    a(test)
    a('s_cbranch_scc1 %s_ok' % name)
    a('s_sleep %d' % SLEEP)
    a('s_sub_u32 s%d, s%d, 1' % (PC, PC))
    a('s_cbranch_scc0 %s' % name)
    a.label(name + '_ok')


def w2_addr(a, VW2, TA, base_s):
    a('v_lshrrev_b32 v6, 3, v1')
    a('s_lshl_b32 s%d, s%d, 7' % (T0, CT2))
    a('v_lshl_add_u32 v6, v6, 10, s%d' % T0)
    a('v_bfe_u32 v7, v1, 1, 2')
    a('v_xor_b32 v7, v7, v3')
    a('v_lshl_add_u32 v6, v7, 5, v6')
    a('v_and_b32 v7, 1, v1')
    a('v_lshl_add_u32 v%d, v7, 4, v6' % VW2)
    for j in range(1, 4):
        a('v_add_u32 v%d, %d, v%d' % (VW2 + j, j * 7168, VW2))
    a('v_lshrrev_b32 v6, 2, v1')
    a('v_lshl_add_u32 v6, v6, 7, s%d' % base_s)
    a('v_and_b32 v7, 3, v1')
    a('v_lshl_add_u32 v6, v7, 3, v6')
    a('v_bfe_u32 v7, v1, 3, 2')
    for cb in range(4):
        a('v_xor_b32 v8, %d, v7' % cb)
        a('v_lshl_add_u32 v%d, v8, 5, v6' % (TA + cb))


def w2_dma(vm, a, VW2, unit, tag, step_inc):
    a('s_add_u32 m0, s%d, %d' % (UB, unit))
    a('s_nop 0')
    for j in range(4):
        vm.op('buffer_load_dwordx4 v%d, %s, s%d offen offset:%d lds' % (VW2 + j, sr(S_W2, 4), SW, j * 1024), tag)
    a(step_inc)


def w2_reads(TA, dst, unit):
    r = []
    for cb in range(4):
        r.append('ds_read_b64_tr_b16 %s, v%d offset:%d' % (vr(dst + 4 * cb, 2), TA + cb, unit))
        r.append('ds_read_b64_tr_b16 %s, v%d offset:%d' % (vr(dst + 4 * cb + 2, 2), TA + cb, unit + 2048))
    return r


def g_load(a, vm, GV):
    a('s_lshl_b32 s%d, s%d, 3' % (T0, RT2))
    a('s_add_u32 s%d, s%d, s%d' % (T0, T0, WV))
    a('s_lshl_b32 s%d, s%d, 5' % (T0, T0))
    a('s_add_u32 s%d, s%d, 0x%x' % (T0, T0, WS_G))
    a('v_lshrrev_b32 v6, 3, v1')
    a('v_lshlrev_b32 v6, 2, v6')
    vm.op('buffer_load_dword v%d, v6, %s, s%d offen sc1' % (GV, sr(S_WS, 4), T0), 'G')


def part_write(a, ACC2, units):
    a('v_and_b32 v6, 7, v1')
    a('v_xor_b32 v6, v6, v3')
    a('v_lshl_add_u32 v7, v4, 8, s%d' % UB)
    a('v_lshl_add_u32 v8, v6, 4, v7')
    a('v_xor_b32 v9, 64, v8')
    for cb in range(4):
        for sb in range(4):
            a('ds_write_b128 v%d, %s offset:%d' % (8 + (cb & 1), vr(ACC2 + (cb * 4 + sb) * 4, 4), units[sb] + (cb >> 1) * 128))


def final(a, GV):
    R = 64
    for p in range(8):
        for hf in range(2):
            off = 12288 * p if p < 4 else 16384 * (p - 4)
            a('ds_read_b128 %s, v%d offset:%d' % (vr(R + (p * 2 + hf) * 4, 4), (10 if p < 4 else 12) + hf, off))
    a('s_lshl_b32 s%d, s%d, 3' % (T0, RT2))
    a('s_add_u32 s%d, s%d, s%d' % (T0, T0, WV))
    a('s_lshl_b32 s%d, s%d, 13' % (T0, T0))
    a('s_lshl_b32 s%d, s%d, 7' % (T1, CT2))
    a('s_add_u32 s%d, s%d, s%d' % (T0, T0, T1))
    a('v_lshrrev_b32 v6, 3, v1')
    a('v_and_b32 v7, 7, v1')
    a('v_lshlrev_b32 v7, 4, v7')
    a('v_lshl_add_u32 v6, v6, 10, v7')
    a('s_waitcnt vmcnt(0)')
    a('v_sub_f32 v8, 1.0, v%d' % GV)
    a('v_cvt_pk_bf16_f32 v8, v8, v8')
    a('v_lshlrev_b32 v8, 16, v8')
    for grp in range(2):
        b = R + grp * 32
        for p in range(1, 4):
            a('s_waitcnt lgkmcnt(%d)' % (14 - grp * 8 - p * 2))
            for j in range(4):
                a('v_pk_add_f32 %s, %s, %s' % (vr(b + 2 * j, 2), vr(b + 2 * j, 2), vr(b + p * 8 + 2 * j, 2)))
        if grp == 0:
            for j in range(8):
                a('v_mul_f32 v%d, v%d, v8' % (b + j, b + j))
    for j in range(8):
        a('v_fma_f32 v%d, v%d, v%d, v%d' % (R + j, R + 32 + j, GV, R + j))
    for j in range(4):
        a('v_cvt_pk_bf16_f32 v%d, v%d, v%d' % (16 + j, R + 2 * j, R + 2 * j + 1))
    a('buffer_store_dwordx4 v[16:19], v6, %s, s%d offen %s' % (sr(S_OUT, 4), T0, OUTM))


def final_addr(a):
    a('s_lshr_b32 s%d, s%d, 1' % (T0, WV))
    a('s_lshl_b32 s%d, s%d, 12' % (T1, T0))
    a('s_add_u32 s%d, s%d, %d' % (T2, T1, ATT))
    a('s_cmp_eq_u32 s%d, 3' % T0)
    a('s_cselect_b32 s%d, %d, s%d' % (T1, L_U[0], T1))
    a('s_and_b32 s%d, s%d, 1' % (T0, WV))
    a('s_lshl_b32 s%d, s%d, 11' % (T0, T0))
    a('v_lshrrev_b32 v6, 3, v1')
    a('v_and_b32 v7, 7, v1')
    a('v_lshlrev_b32 v7, 1, v7')
    a('v_xor_b32 v7, v7, v6')
    a('v_lshl_add_u32 v6, v6, 8, s%d' % T0)
    a('v_lshl_add_u32 v6, v7, 4, v6')
    a('v_xor_b32 v7, 16, v6')
    a('v_add_u32 v10, s%d, v6' % T1)
    a('v_add_u32 v11, s%d, v7' % T1)
    a('v_add_u32 v12, s%d, v6' % T2)
    a('v_add_u32 v13, s%d, v7' % T2)


def gen(a):
    K = NAME + '_kernel'
    a.raw('.globl %s' % K)
    a.raw('.p2align 12')
    a.raw('.type %s,@function' % K)
    a.label(K)
    a('s_cmp_ge_u32 s2, 256')
    a('s_cbranch_scc1 k_end')
    if DIAG:
        a('v_mov_b32 v%d, 0' % STV)
    stamp(a, 0)
    stamp(a, 62, True)
    a('s_load_dwordx16 s[4:19], s[0:1], 0')
    a('s_load_dwordx4 s[20:23], s[0:1], 64')
    a('s_load_dwordx2 s[24:25], s[0:1], 80')
    if CPF:
        a('s_getpc_b64 s[98:99]')
        a.label('k_pc')
        a('v_xor_b32 v2, 0x100, v0')
        a('v_lshlrev_b32 v2, 7, v2')
        a('v_min_u32 v2, k_end-k_pc, v2')
        a('global_load_dword v94, v2, s[98:99]')
    a('v_lshrrev_b32 v2, 6, v0')
    a('v_and_b32 v1, 63, v0')
    a('v_readfirstlane_b32 s%d, v2' % WV)
    a('s_and_b32 s%d, s2, 7' % T0)
    a('s_lshr_b32 s%d, s2, 3' % T1)
    a('s_and_b32 s%d, s%d, 1' % (T2, T0))
    a('s_lshl_b32 s%d, s%d, 2' % (T2, T2))
    a('s_and_b32 s%d, s%d, 3' % (T3, T1))
    a('s_add_u32 s%d, s%d, s%d' % (RT, T2, T3))
    a('s_lshl_b32 s%d, s%d, 2' % (RT2, T0))
    a('s_add_u32 s%d, s%d, s%d' % (RT2, RT2, T3))
    a('s_lshr_b32 s%d, s%d, 1' % (T2, T0))
    a('s_lshl_b32 s%d, s%d, 3' % (T2, T2))
    a('s_lshr_b32 s%d, s%d, 2' % (CT2, T1))
    a('s_add_u32 s%d, s%d, s%d' % (CT, T2, CT2))
    a('v_lshrrev_b32 v3, 4, v1')
    a('v_and_b32 v4, 15, v1')
    a('v_lshlrev_b32 v5, 4, v1')
    a('s_cmp_ge_u32 s%d, 4' % WV)
    a('s_cbranch_scc1 k_C')
    gen_loader(a)
    gen_compute(a)
    a.label('k_end')
    a('s_endpgm')


def gen_loader(a):
    vm = Cnt(a, 'vmcnt', 63)
    lg = Cnt(a, 'lgkmcnt', 15)
    VX, VG, VU, VKV, VT = 32, 40, 42, 44, 45
    TD = 46
    DBV = 54
    VW2, TA, GV = 56, 60, 15
    a('s_setprio 3')
    a('s_cmp_ge_u32 s%d, 28' % CT)
    a('s_cselect_b32 s%d, 6, 7' % RB)
    a('s_lshl_b32 s%d, s%d, 9' % (RB, RB))
    a('s_lshl_b32 s%d, s%d, 7' % (T0, CT))
    a('s_sub_u32 s%d, s%d, 28' % (T1, CT))
    a('s_lshl_b32 s%d, s%d, 8' % (T1, T1))
    a('s_add_u32 s%d, s%d, 128' % (T2, T1))
    a('s_cmp_ge_u32 s%d, 28' % CT)
    a('s_cselect_b32 s%d, s%d, s%d' % (GOFF, T1, T0))
    a('s_cselect_b32 s%d, s%d, s%d' % (UOFF, T2, T0))
    a('v_lshrrev_b32 v2, 5, v1')
    a('s_cmp_eq_u32 s%d, 0' % WV)
    a('s_cbranch_scc1 k_tx')
    a('s_cmp_eq_u32 s%d, 3' % WV)
    a('s_cbranch_scc1 k_tkv')
    a('s_and_b32 s%d, s%d, 3' % (T0, RT))
    a('s_lshl_b32 s%d, s%d, 4' % (T0, T0))
    a('v_lshl_add_u32 v%d, v2, 6, s%d' % (VT, T0))
    a('v_add_u32 v%d, v%d, v4' % (VT, VT))
    a('v_mul_lo_u32 v%d, v%d, s%d' % (VT, VT, RB))
    a('s_lshl_b32 s%d, s%d, 7' % (STS, RB))
    a('s_cmp_eq_u32 s%d, 1' % WV)
    a('s_cselect_b32 s%d, s%d, s%d' % (STO, GOFF, UOFF))
    a('s_waitcnt lgkmcnt(0)')
    a('s_cselect_b64 s[%d:%d], s[%d:%d], s[%d:%d]' % (S_T, S_T + 1, P_WG, P_WG + 1, P_WU, P_WU + 1))
    a('s_cmp_ge_u32 s%d, 28' % CT)
    a('s_cselect_b64 s[%d:%d], s[%d:%d], s[%d:%d]' % (S_T, S_T + 1, P_QKV, P_QKV + 1, S_T, S_T + 1))
    a('s_lshl_b32 s%d, s%d, 9' % (S_T + 2, RB))
    a('s_branch k_tgo')
    a.label('k_tx')
    a('s_lshl_b32 s%d, s%d, 3' % (T0, RT))
    a('s_and_b32 s%d, s%d, 7' % (T1, CT))
    a('s_add_u32 s%d, s%d, s%d' % (T0, T0, T1))
    a('s_lshl_b32 s%d, s%d, 15' % (STO, T0))
    a('v_and_b32 v6, 31, v1')
    a('v_lshlrev_b32 v%d, 10, v6' % VT)
    a('v_lshl_add_u32 v%d, v2, 7, v%d' % (VT, VT))
    a('s_mov_b32 s%d, 256' % STS)
    a('s_mov_b32 s%d, 0x%x' % (S_T + 2, 2048 * 1024))
    a('s_waitcnt lgkmcnt(0)')
    a('s_mov_b64 s[%d:%d], s[%d:%d]' % (S_T, S_T + 1, P_X, P_X + 1))
    a('s_branch k_tgo')
    a.label('k_tkv')
    a('s_and_b32 s%d, s%d, 3' % (T0, RT))
    a('s_lshl_b32 s%d, s%d, 2' % (T0, T0))
    a('s_and_b32 s%d, s%d, 3' % (T2, CT))
    a('s_add_u32 s%d, s%d, s%d' % (T0, T0, T2))
    a('s_lshl_b32 s%d, s%d, 2' % (T0, T0))
    a('v_lshl_add_u32 v%d, v2, 6, s%d' % (VT, T0))
    a('v_and_b32 v6, 3, v4')
    a('v_add_u32 v%d, v%d, v6' % (VT, VT))
    a('v_mul_u32_u24 v%d, 3072, v%d' % (VT, VT))
    a('v_bfe_u32 v6, v4, 2, 1')
    a('v_lshl_add_u32 v%d, v6, 10, v%d' % (VT, VT))
    a('s_lshr_b32 s%d, s%d, 2' % (T2, CT))
    a('s_lshl_b32 s%d, s%d, 7' % (T2, T2))
    a('s_add_u32 s%d, s%d, 1024' % (STO, T2))
    a('s_mov_b32 s%d, 0x%x' % (STS, 128 * 3072))
    a('s_mov_b32 s%d, 0x%x' % (S_T + 2, 512 * 3072))
    a('s_waitcnt lgkmcnt(0)')
    a('s_mov_b64 s[%d:%d], s[%d:%d]' % (S_T, S_T + 1, P_QKV, P_QKV + 1))
    a.label('k_tgo')
    a('s_and_b32 s%d, s%d, 0xffff' % (S_T + 1, S_T + 1))
    a('s_mov_b32 s%d, 0x00020000' % (S_T + 3))
    tcount = [0]

    def touch():
        p = tcount[0]
        tcount[0] += 1
        vm.op('buffer_load_dword v%d, v%d, %s, s%d offen' % (TD + p, VT, sr(S_T, 4), STO), 'T%d' % p)
        a('s_add_u32 s%d, s%d, s%d' % (STO, STO, STS))

    NT0 = {'a': 2, 'n': 0, 'b': 1, 'c': 4}[SCHED[0]]
    for _ in range(NT0):
        touch()
    a('v_lshrrev_b32 v6, 3, v1')
    a('v_and_b32 v7, 7, v1')
    a('v_xor_b32 v17, v7, v3')
    a('v_xor_b32 v18, 4, v17')
    a('s_lshl_b32 s%d, s%d, 8' % (T0, RT))
    a('s_lshl_b32 s%d, s%d, 6' % (T1, WV))
    a('s_add_u32 s%d, s%d, s%d' % (T0, T0, T1))
    a('s_lshl_b32 s%d, s%d, 10' % (T0, T0))
    a('v_lshl_add_u32 v19, v6, 10, s%d' % T0)
    a('v_lshl_add_u32 v20, v17, 4, v19')
    a('v_lshl_add_u32 v21, v18, 4, v19')
    for jj in range(8):
        a('v_add_u32 v%d, 0x%x, v%d' % (VX + jj, jj * 8192 - (jj & 3) * 1024, 20 + (jj & 1)))
    a('s_lshl_b32 s%d, s%d, 4' % (T0, WV))
    a('v_add_u32 v19, s%d, v6' % T0)
    a('v_mul_lo_u32 v19, v19, s%d' % RB)
    a('v_and_b32 v20, 1, v7')
    a('v_lshl_add_u32 v19, v20, 4, v19')
    a('v_lshrrev_b32 v20, 1, v7')
    a('v_and_b32 v21, 1, v3')
    a('v_xor_b32 v20, v20, v21')
    a('v_xor_b32 v21, 2, v20')
    a('v_lshl_add_u32 v20, v20, 5, v19')
    a('v_lshl_add_u32 v21, v21, 5, v19')
    a('s_lshl_b32 s%d, s%d, 3' % (T1, RB))
    a('s_sub_u32 s%d, s%d, 1024' % (T1, T1))
    a('v_add_u32 v21, s%d, v21' % T1)
    a('v_add_u32 v%d, s%d, v20' % (VG, GOFF))
    a('v_add_u32 v%d, s%d, v21' % (VG + 1, GOFF))
    a('v_add_u32 v%d, s%d, v20' % (VU, UOFF))
    a('v_add_u32 v%d, s%d, v21' % (VU + 1, UOFF))
    a('v_lshrrev_b32 v19, 2, v1')
    a('v_add_u32 v19, s%d, v19' % T0)
    a('v_mul_u32_u24 v19, 3072, v19')
    a('v_bfe_u32 v20, v1, 1, 1')
    a('v_xor_b32 v20, v20, v2')
    a('v_lshl_add_u32 v19, v20, 10, v19')
    a('v_and_b32 v20, 1, v1')
    a('v_lshl_add_u32 v19, v20, 4, v19')
    a('s_lshl_b32 s%d, s%d, 5' % (T1, CT))
    a('s_add_u32 s%d, s%d, 1024' % (T1, T1))
    a('v_add_u32 v%d, s%d, v19' % (VKV, T1))
    a('s_lshl_b32 s%d, s%d, 13' % (XL, WV))
    a('s_mul_i32 s%d, s%d, %d' % (WL, WV, TG))
    a('s_add_u32 s%d, s%d, %d' % (WL, WL, WREG))
    a('s_lshl_b32 s%d, s%d, 6' % (SGS, RB))
    a('s_and_b32 s%d, s%d, 3' % (T0, RT))
    a('s_mul_i32 s%d, s%d, %d' % (T0, T0, int(ROT[0])))
    a('s_mul_i32 s%d, s%d, %d' % (T1, CT2, int(ROT[1])))
    a('s_add_u32 s%d, s%d, s%d' % (KI, T0, T1))
    a('s_and_b32 s%d, s%d, 7' % (KI, KI))
    a('s_lshl_b32 s%d, s%d, 7' % (SX, KI))
    a('s_mul_i32 s%d, s%d, s%d' % (SG, KI, SGS))
    a('s_mul_i32 s%d, s%d, %d' % (SKV, KI, 64 * 3072))
    a('s_mov_b32 s%d, s%d' % (GOFF, SX))
    srd(a, S_X, P_X, 2048 * 1024)
    a('s_cmp_ge_u32 s%d, 28' % CT)
    a('s_cselect_b64 s[%d:%d], s[%d:%d], s[%d:%d]' % (P_WG, P_WG + 1, P_QKV, P_QKV + 1, P_WG, P_WG + 1))
    a('s_cselect_b64 s[%d:%d], s[%d:%d], s[%d:%d]' % (P_WU, P_WU + 1, P_QKV, P_QKV + 1, P_WU, P_WU + 1))
    a('s_lshl_b32 s%d, s%d, 9' % (T0, RB))
    srd(a, S_G, P_WG, 's%d' % T0)
    srd(a, S_U, P_WU, 's%d' % T0)
    srd(a, S_KV, P_QKV, 512 * 3072)
    srd(a, S_GW, P_GW, 1024)

    def dma(stage):
        sb = SLOTB[stage % 3]
        r = []
        for half in range(2):
            r.append('s_add_u32 m0, s%d, %d' % (XL, sb + half * 4096))
            r.append('s_nop 0')
            for q in range(4):
                r.append('buffer_load_dwordx4 v%d, %s, s%d offen offset:%d lds' % (VX + half * 4 + q, sr(S_X, 4), SX, q * 1024))
        r.append('s_add_u32 m0, s%d, %d' % (WL, sb))
        r.append('s_add_u32 s%d, s%d, 1' % (KI, KI))
        r.append('s_and_b32 s%d, s%d, 7' % (KI, KI))
        r.append('s_lshl_b32 s%d, s%d, 7' % (SX, KI))
        for q in range(2):
            r.append('buffer_load_dwordx4 v%d, %s, s%d offen offset:%d lds' % (VG + q, sr(S_G, 4), SG, q * 1024))
        r.append('s_add_u32 m0, s%d, %d' % (WL, sb + 2048))
        r.append('s_nop 0')
        for q in range(2):
            r.append('buffer_load_dwordx4 v%d, %s, s%d offen offset:%d lds' % (VU + q, sr(S_U, 4), SG, q * 1024))
        r.append('s_add_u32 m0, s%d, %d' % (WL, sb + 4096))
        r.append('s_mul_i32 s%d, s%d, s%d' % (SG, KI, SGS))
        r.append('buffer_load_dwordx4 v%d, %s, s%d offen lds' % (VKV, sr(S_KV, 4), SKV))
        r.append('s_mul_i32 s%d, s%d, %d' % (SKV, KI, 64 * 3072))
        return [(x, stage) for x in r]

    def emit(lst, n=None):
        c = 0
        while lst and (n is None or c < n):
            t, st = lst.pop(0)
            if t.startswith('buffer_load'):
                vm.op(t, 'D%d' % st)
                c += 1
            else:
                a(t)

    if NT0:
        vm.wait('T0')
    stamp(a, 1)
    emit(dma(0))
    a('s_lshl_b32 m0, s%d, 10' % WV)
    a('s_nop 0')
    vm.op('buffer_load_dwordx4 v5, %s, 0 offen lds' % sr(S_GW, 4), 'D0')
    d1 = dma(1)
    emit(d1, PRE)
    GWR, GX, GA, GAD = 160, 16, 20, 22
    a('s_mul_i32 s%d, s%d, 37' % (T0, CT))
    a('s_lshr_b32 s%d, s%d, 8' % (T0, T0))
    a('s_mul_i32 s%d, s%d, 7' % (T1, T0))
    a('s_sub_u32 s%d, s%d, 24' % (T2, CT))
    a('s_cmp_ge_u32 s%d, 28' % CT)
    a('s_cselect_b32 s%d, s%d, s%d' % (T0, T2, T0))
    a('s_cselect_b32 s%d, s%d, s%d' % (T1, CT, T1))
    a('s_cmp_eq_u32 s%d, s%d' % (T1, CT))
    a('s_cselect_b32 s%d, s%d, -1' % (GF, T0))
    if NOGATE:
        a('s_mov_b32 s%d, -1' % GF)
    a('s_lshl_b32 s%d, s%d, 10' % (T1, T0))
    a('s_add_u32 s%d, s%d, s%d' % (T1, T1, XL))
    for k in range(3):
        a('s_add_u32 s%d, s%d, %d' % (T2, T1, SLOTB[k]))
        a('v_add_u32 v%d, s%d, v5' % (GAD + k, T2))
    a('s_and_b32 s%d, s%d, 1' % (T0, T0))
    a('s_lshl_b32 s%d, s%d, 2' % (T0, T0))
    a('v_xor_b32 v%d, s%d, v17' % (GAD + 3, T0))
    a('v_lshl_add_u32 v%d, v%d, 4, s%d' % (GAD + 3, GAD + 3, GOFF))
    a('v_mov_b32 v%d, 0' % GA)
    a('v_mov_b32 v%d, 0' % (GA + 1))
    VTW, VTO = 26, 27
    a('v_min_u32 v%d, 6, v6' % VTW)
    a('v_lshlrev_b32 v%d, 10, v%d' % (VTW, VTW))
    a('v_lshl_add_u32 v%d, v7, 7, v%d' % (VTW, VTW))
    a('v_and_b32 v%d, 31, v1' % VTO)
    a('v_lshlrev_b32 v%d, 7, v%d' % (VTO, VTO))
    a('s_lshr_b32 s%d, s2, 3' % T0)
    a('s_lshl_b32 s%d, s%d, 2' % (T0, T0))
    a('s_add_u32 s%d, s%d, s%d' % (T0, T0, WV))
    a('s_lshl_b32 s%d, s%d, 12' % (TO, T0))
    a('s_mul_i32 s%d, s%d, %d' % (TW, T0, 7 * 1024))
    a('s_bitcmp1_b32 s2, 0')
    a('s_cselect_b32 s%d, %d, 0' % (T0, 896 * 1024))
    a('s_add_u32 s%d, s%d, s%d' % (TW, TW, T0))
    srd(a, S_GW, P_WO, 512 * 1024)

    def w2touch(t):
        if t < 2:
            vm.op('buffer_load_dword v%d, v%d, %s, s%d offen' % (28 + t, VTW, sr(S_W2, 4), TW), 'TW')
            a('s_add_u32 s%d, s%d, %d' % (T0, TW, 896 * 1024))
            a('s_sub_u32 s%d, s%d, %d' % (T1, TW, 896 * 1024))
            a('s_cselect_b32 s%d, s%d, s%d' % (TW, T0, T1))
        else:
            vm.op('buffer_load_dword v%d, v%d, %s, s%d offen' % (28 + t, VTO, sr(S_GW, 4), TO), 'TW')

    def gate(stages):
        lab = 'k_ng%d' % stages[0]
        a('s_cmp_lt_i32 s%d, 0' % GF)
        a('s_cbranch_scc1 %s' % lab)
        if stages[0] == 0:
            for n in range(8):
                a('ds_read_b128 %s, v%d offset:%d' % (vr(GWR + 4 * n, 4), GAD + 3, n * 128))
        for st in stages:
            if st == 7:
                a('s_waitcnt vmcnt(0)')
            a('ds_read_b128 %s, v%d' % (vr(GX, 4), GAD + st % 3))
            a('s_waitcnt lgkmcnt(0)')
            for n in range(4):
                a('v_dot2_f32_bf16 v%d, v%d, v%d, v%d' % (GA + (n & 1), GX + n, GWR + 4 * st + n, GA + (n & 1)))
        if stages[-1] == 7:
            a('s_lshl_b32 s%d, s%d, 2' % (T2, RT))
            a('s_add_u32 s%d, s%d, s%d' % (T2, T2, WV))
            a('s_lshl_b32 s%d, s%d, 3' % (T2, T2))
            a('s_add_u32 s%d, s%d, s%d' % (T2, T2, GF))
            a('s_lshl_b32 s%d, s%d, 5' % (T2, T2))
            a('s_add_u32 s%d, s%d, 0x%x' % (T2, T2, WS_G))
            a('v_lshrrev_b32 v17, 3, v1')
            a('v_lshlrev_b32 v17, 2, v17')
            a('v_add_f32 v16, v%d, v%d' % (GA, GA + 1))
            a('v_add_f32_dpp v16, v16, v16 quad_perm:[1,0,3,2] row_mask:0xf bank_mask:0xf')
            a('v_add_f32_dpp v16, v16, v16 quad_perm:[2,3,0,1] row_mask:0xf bank_mask:0xf')
            a('v_add_f32_dpp v16, v16, v16 row_half_mirror row_mask:0xf bank_mask:0xf')
            a('v_cvt_pk_bf16_f32 v16, v16, v16')
            a('v_lshlrev_b32 v16, 16, v16')
            a('v_mul_f32 v16, 0x%x, v16' % NLOG2E)
            a('v_exp_f32 v16, v16')
            a('v_add_f32 v16, 1.0, v16')
            a('v_rcp_f32 v16, v16')
            a('v_cvt_pk_bf16_f32 v16, v16, v16')
            a('v_lshlrev_b32 v16, 16, v16')
            a('buffer_store_dword v16, v17, %s, s%d offen sc1' % (sr(S_WS, 4), T2))
        a.label(lab)
    srd(a, S_WS, P_WS, WS_SIZE)
    srd(a, S_W2, P_WD, 1792 * 1024)
    srd(a, S_OUT, P_OUT, 2048 * 1024)
    srd(a, S_DBG, P_DBG, 256)
    a('s_mul_i32 s%d, s%d, 12288' % (UB, WV))
    w2_addr(a, VW2, TA, UB)
    final_addr(a)
    a('s_and_b32 s%d, s%d, %d' % (T0, RT2, 3 if ROTJ else 0))
    a('s_lshl_b32 s%d, s%d, 1' % (T0, T0))
    a('s_add_u32 s%d, s%d, s%d' % (T0, T0, CT2))
    a('s_mul_i32 s%d, s%d, 7' % (T0, T0))
    a('s_lshr_b32 s%d, s%d, 2' % (T0, T0))
    a('s_sub_u32 s%d, s%d, 14' % (T1, T0))
    a('s_cselect_b32 s%d, s%d, s%d' % (T0, T0, T1))
    a('s_mul_i32 s%d, s%d, 14' % (T1, WV))
    a('s_lshl_b32 s%d, s%d, 15' % (SWB, T1))
    a('s_add_u32 s%d, s%d, %d' % (SWE, SWB, 14 * 32768))
    a('s_lshl_b32 s%d, s%d, 15' % (T2, T0))
    a('s_add_u32 s%d, s%d, s%d' % (SW, SWB, T2))
    a('s_mul_i32 s%d, s%d, 72' % (T2, RT2))
    a('s_add_u32 s%d, s%d, s%d' % (T2, T2, T1))
    a('s_lshl_b32 s%d, s%d, 12' % (SAB, T2))
    a('s_add_u32 s%d, s%d, %d' % (SAE, SAB, 14 * 4096))
    a('s_lshl_b32 s%d, s%d, 12' % (T2, T0))
    a('s_add_u32 s%d, s%d, s%d' % (SA, SAB, T2))
    a('s_mul_i32 s%d, s%d, 7' % (T0, WV))
    a('s_lshl_b32 s%d, 0x7f, s%d' % (MASK, T0))
    a('v_and_b32 v2, 31, v1')
    a('v_lshlrev_b32 v2, 2, v2')
    winc = ['s_add_u32 s%d, s%d, 32768' % (SW, SW), 's_cmp_eq_u32 s%d, s%d' % (SW, SWE),
            's_cselect_b32 s%d, s%d, s%d' % (SW, SWB, SW)]
    ainc = ['s_add_u32 s%d, s%d, 4096' % (SA, SA), 's_cmp_eq_u32 s%d, s%d' % (SA, SAE),
            's_cselect_b32 s%d, s%d, s%d' % (SA, SAB, SA)]
    stamp(a, 2)
    vm.wait('D0')
    a('s_barrier')
    stamp(a, 3)
    stamp(a, 45, True)
    emit(d1)
    WR = 64
    ACC2 = 192

    def wd(i, unit):
        w2_dma(vm, a, VW2, unit, 'W%d' % i, winc)

    def wr(i, unit):
        vm.wait('W%d' % i)
        for r in w2_reads(TA, WR + 16 * i, unit):
            lg.op(r, 'R%d' % i)

    for s in range(8):
        if NT0 and tcount[0] < 4 and s % 2 == 0:
            touch()
        if s + 2 < 8:
            emit(dma(s + 2))
        for t, ch in enumerate(W2T):
            if int(ch) == s and not P1ONLY:
                w2touch(t)
        if s < 6:
            gate([s])
        elif s == 6:
            gate([6, 7])
        if s == 3:
            vm.op('buffer_load_dword v%d, v2, %s, 0 offen%s sc1' % (DBV, sr(S_DBG, 4), DO), 'I')
        if s == 5:
            for r in range(64):
                a('v_mov_b32 v%d, 0' % (ACC2 + r))
            vm.wait('I')
            a('v_cmp_ne_u32 vcc, 0, v%d' % DBV)
            a('s_cmp_eq_u64 vcc, -1')
            a('s_cbranch_scc1 k_init_ok')
            a('s_mov_b32 s%d, 0x%x' % (PC, POLLS))
            a.label('k_init')
            a('buffer_load_dword v%d, v2, %s, 0 offen%s sc1' % (DBV, sr(S_DBG, 4), DO))
            a('s_waitcnt vmcnt(0)')
            a('v_cmp_ne_u32 vcc, 0, v%d' % DBV)
            a('s_cmp_eq_u64 vcc, -1')
            a('s_cbranch_scc1 k_init_ok')
            a('s_sleep 1')
            a('s_sub_u32 s%d, s%d, 1' % (PC, PC))
            a('s_cbranch_scc0 k_init')
            a.label('k_init_ok')
        if s == 6 and not P1ONLY:
            for i in range(3):
                wd(i, E_U[i])
        if s == 7 and not P1ONLY:
            wd(3, L_U[0])
            wd(4, L_U[1])
            for i in range(3):
                wr(i, E_U[i])
                lg.all()
                wd(5 + i, E_U[i])
        stamp(a, 5 + 3 * s)
        if s + 1 < 8:
            vm.wait('D%d' % (s + 1))
        stamp(a, 6 + 3 * s)
        a('s_barrier')
        stamp(a, 7 + 3 * s)
        stamp(a, 46 + s, True)
    if PRIO:
        a('s_setprio 0')
    a('v_lshlrev_b32 v6, 2, v1')
    a('v_add_u32 v7, s%d, v6' % UB)
    a('v_and_b32 v8, 12, v6')
    a('v_add_u32 v8, s%d, v8' % UB)
    for w in range(4):
        lg.op('ds_read_b32 v%d, v7 offset:%d' % (16 + w, L_U[2] + w * 256), 'kv')
    for w in range(4):
        lg.op('ds_read_b32 v%d, v8 offset:%d' % (20 + w, L_U[2] + 1024 + w * 256), 'kv')
    a('s_lshl_b32 s%d, s%d, 11' % (T0, CT))
    a('s_add_u32 s%d, s%d, 0x%x' % (T0, T0, WS_BLK))
    a('s_lshl_b32 s%d, s%d, 8' % (T1, WV))
    a('s_add_u32 s%d, s%d, s%d' % (T1, T1, T0))
    a('s_lshl_b32 s%d, s%d, 4' % (T2, WV))
    a('s_add_u32 s%d, s%d, s%d' % (T2, T2, T0))
    a('s_lshl_b32 s%d, s%d, 2' % (T3, RT))
    a('s_add_u32 s%d, s%d, s%d' % (T3, T3, WV))
    a('s_lshl_b32 s%d, s%d, 2' % (T3, T3))
    a('s_add_u32 s%d, s%d, s%d' % (T3, T3, T0))
    lg.all()
    a('v_add_f32 v16, v16, v17')
    a('v_add_f32 v18, v18, v19')
    a('v_add_f32 v20, v20, v21')
    a('v_add_f32 v22, v22, v23')
    a('v_add_f32 v16, v16, v18')
    a('v_add_f32 v20, v20, v22')
    a('v_mov_b32 v9, 1')
    vm.op('buffer_atomic_add_f32 v16, v6, %s, s%d offen' % (sr(S_WS, 4), T1), 'AT')
    a('s_mov_b64 exec, 15')
    vm.op('buffer_atomic_add_f32 v20, v6, %s, s%d offen offset:%d' % (sr(S_WS, 4), T2, O_Z), 'AT')
    a('s_mov_b64 exec, -1')
    stamp(a, 30)

    def kflag():
        vm.wait('AT')
        a('s_mov_b64 exec, 1')
        vm.op('buffer_store_dword v9, off, %s, s%d offset:%d sc1' % (sr(S_WS, 4), T3, O_KF), 'KF')
        a('s_mov_b64 exec, -1')

    if P1ONLY:
        kflag()
        stamp_out(a)
        a('s_endpgm')
        return
    if B9:
        a('s_barrier')
    for i in (3, 4):
        wr(i, L_U[i - 3])
        lg.all()
        wd(5 + i, L_U[i - 3])
    wd(10, L_U[2])
    kflag()
    stamp(a, 31)
    for i in (5, 6, 7):
        wr(i, E_U[i - 5])
        lg.all()
        wd(6 + i, E_U[i - 5])
    stamp(a, 32)
    UNIT = {8: L_U[0], 9: L_U[1], 10: L_U[2], 11: E_U[0], 12: E_U[1], 13: E_U[2]}
    a('s_lshl_b32 s%d, s%d, 11' % (T0, RT2))
    a('s_add_u32 s%d, s%d, 0x%x' % (T0, T0, WS_BLK))
    poll(a, vm, 'k_pollL', ['buffer_load_dword v9, v2, %s, s%d offen offset:%d sc1' % (sr(S_WS, 4), T0, O_F)],
         ['v_cmp_ne_u32 vcc, 0, v9', 's_and_b32 s%d, vcc_lo, s%d' % (T1, MASK), 's_cmp_eq_u32 s%d, s%d' % (T1, MASK)])
    stamp(a, 33)
    stamp(a, 56, True)
    TA2 = 6
    for j in range(4):
        a('v_mov_b32 v%d, v%d' % (TA2 + j, TA + j)) if False else None
    free = [16, 32]
    extra = 48
    ag = {}
    nxt = [0]

    def aload():
        if nxt[0] < 14 and free:
            i = nxt[0]; nxt[0] += 1
            g = free.pop(0); ag[i] = g
            for sb in range(4):
                vm.op('buffer_load_dwordx4 %s, v5, %s, s%d offen offset:%d sc1' % (vr(g + 4 * sb, 4), sr(S_WS, 4), SA, sb * 1024), 'A%d' % i)
            a(ainc)
            return True
        return False

    aload(); aload()
    g_load(a, vm, GV)
    wg = {i: WR + 16 * i for i in range(8)}
    for i in range(14):
        pre = []
        if i + 1 >= 8 and i + 1 < 14:
            g = free.pop(0); wg[i + 1] = g
            vm.wait('W%d' % (i + 1))
            pre = w2_reads(TA, g, UNIT[i + 1])
        vm.wait('A%d' % i)
        if i >= 8:
            lg.wait('R%d' % i)
        k = 0
        for cb in range(4):
            for sb in range(4):
                a(mf(ACC2 + (cb * 4 + sb) * 4, wg[i] + 4 * cb, ag[i] + 4 * sb))
                if k < len(pre):
                    lg.op(pre[k], 'R%d' % (i + 1)); k += 1
        free.append(ag[i]); free.append(wg[i])
        while aload():
            pass
        if i in (3, 7):
            stamp(a, 34 + i // 4)
    stamp(a, 36)
    part_write(a, ACC2, [E_U[0], E_U[1], E_U[2], L_U[0]])
    a('s_waitcnt lgkmcnt(0)')
    stamp(a, 37)
    a('s_barrier')
    stamp(a, 38)
    a('s_branch k_final')


def gen_compute(a):
    a.label('k_C')
    vm = Cnt(a, 'vmcnt', 63)
    XS = [32, 48]
    WRING = 64
    XA, WA, KA = 84, 86, 90
    NL = 92
    KW = 93
    ACC = 96
    GV = 15
    W = 27

    def acc(cb, sb):
        return ACC + (cb * 4 + sb) * 4

    a('s_sub_u32 s%d, s%d, 4' % (W, WV))
    a('s_waitcnt lgkmcnt(0)')
    srd(a, S_WS, P_WS, WS_SIZE)
    srd(a, S_DBG, P_DBG, 256)
    a('s_cmp_ge_u32 s2, 32')
    a('s_cbranch_scc1 k_noinit')
    a('s_cmp_lg_u32 s%d, 3' % W)
    a('s_cbranch_scc1 k_noinit')
    for j in range(4):
        a('v_mov_b32 v%d, 0' % (16 + j))
    a('s_lshl_b32 s%d, s2, 11' % T0)
    a('s_add_u32 s%d, s%d, 0x%x' % (T0, T0, WS_BLK))
    a('buffer_store_dwordx4 v[16:19], v5, %s, s%d offen sc1' % (sr(S_WS, 4), T0))
    a('buffer_store_dwordx4 v[16:19], v5, %s, s%d offen offset:1024 sc1' % (sr(S_WS, 4), T0))
    a('s_lshl_b32 s%d, s2, 2' % T0)
    a('v_mov_b32 v20, 1')
    a('s_waitcnt vmcnt(0)')
    a('s_mov_b64 exec, 1')
    a('buffer_store_dword v20, off, %s, s%d%s sc1' % (sr(S_DBG, 4), T0, DO))
    a('s_mov_b64 exec, -1')
    a.label('k_noinit')
    a('s_lshl_b32 s%d, s%d, 13' % (T0, W))
    a('s_add_u32 s%d, s%d, %d' % (T0, T0, SLOTB[0]))
    a('v_lshl_add_u32 v16, v4, 7, s%d' % T0)
    a('v_bfe_u32 v17, v4, 1, 3')
    a('v_xor_b32 v17, v17, v3')
    a('v_lshl_add_u32 v%d, v17, 4, v16' % XA)
    a('v_xor_b32 v%d, 64, v%d' % (XA + 1, XA))
    a('v_lshrrev_b32 v16, 1, v3')
    a('v_mul_u32_u24 v16, %d, v16' % TG)
    a('v_and_b32 v17, 3, v4')
    a('v_lshl_add_u32 v16, v17, 3, v16')
    a('v_add_u32 v16, %d, v16' % (SLOTB[0] + WREG))
    a('v_and_b32 v17, 1, v3')
    a('v_lshrrev_b32 v18, 2, v4')
    a('v_lshl_add_u32 v18, v17, 3, v18')
    a('v_lshl_add_u32 v19, v18, 6, v16')
    a('v_lshl_add_u32 v%d, v17, 5, v19' % KA)
    a('v_add_u32 v%d, 4096, v%d' % (KA, KA))
    a('v_xor_b32 v%d, 32, v%d' % (KA + 1, KA))
    a('v_lshl_add_u32 v19, v18, 7, v16')
    a('v_bfe_u32 v18, v1, 3, 2')
    for cb in range(4):
        a('v_xor_b32 v20, %d, v18' % cb)
        a('v_lshl_add_u32 v%d, v20, 5, v19' % (WA + cb))
    a('v_mul_u32_u24 v16, 12288, v3')
    a('v_lshl_add_u32 v16, v4, 4, v16')
    a('s_lshl_b32 s%d, s%d, 8' % (T0, W))
    a('s_add_u32 s%d, s%d, %d' % (T0, T0, L_U[2]))
    a('v_add_u32 v%d, s%d, v16' % (KW, T0))
    a('v_mov_b32 v%d, 0x%x' % (NL, NLOG2E))
    a('s_mov_b32 s%d, 0x%x' % (L2E, LOG2E))
    a('s_mov_b32 s%d, 0' % SLOTI)
    a('s_mov_b32 s%d, 0' % CNT)
    srd(a, S_W2, P_WO, 512 * 1024)
    srd(a, S_OUT, P_OUT, 2048 * 1024)
    a('s_lshl_b32 s%d, s%d, 14' % (UB, W))
    a('s_add_u32 s%d, s%d, %d' % (UB, UB, ATT))
    final_addr(a)
    a('s_cmp_ge_u32 s%d, 28' % CT)
    a('s_cselect_b32 s%d, 1.0, 0' % MASK)
    for r in range(64, 160):
        a('v_mov_b32 v%d, s%d' % (ACC + r, MASK))
    for j in range(4):
        a('v_mov_b32 v%d, 0x%x' % (6 + j, ONES))
    for r in range(16):
        a('v_mov_b32 v%d, 1.0' % (ACC + r))
    for r in range(16, 32):
        a('v_mov_b32 v%d, 0' % (ACC + r))
    for r in range(32, 64):
        a('v_mov_b32 v%d, s%d' % (ACC + r, MASK))

    def wread(f, cb, kk):
        d = WRING + 4 * (f % 5)
        if cb < 2:
            ad, off, st = KA + cb, kk * 2 * TG, 256
        else:
            ad, off, st = WA + (cb - 2) // 2, kk * 2 * TG + ((cb - 2) & 1) * 2048, 512
        return ['ds_read_b64_tr_b16 %s, v%d offset:%d' % (vr(d, 2), ad, off),
                'ds_read_b64_tr_b16 %s, v%d offset:%d' % (vr(d + 2, 2), ad, off + st)]

    def xread(kk, sb):
        return 'ds_read_b128 %s, v%d offset:%d' % (vr(XS[kk] + 4 * sb, 4), XA + kk, sb * 2048)

    def mma(f, cb, kk, sb):
        w = WRING + 4 * (f % 5)
        x = XS[kk] + 4 * sb
        return mf(acc(cb, sb), x, w) if cb < 2 else mf(acc(cb, sb), w, x)

    NORM = [(cb, kk) for kk in range(2) for cb in range(10)]

    def head_ops():
        r = []
        w0, w1, w2 = wread(0, 0, 0), wread(1, 1, 0), wread(2, 2, 0)
        r += [(0, w0[0], 'W0'), (0, w0[1], 'W0'), (1, xread(0, 0), 'X00'), (2, xread(0, 1), 'X01'), (3, xread(0, 2), 'X02'),
              (4, xread(0, 3), 'X03'), (5, w1[0], 'W1'), (6, w1[1], 'W1'), (8, w2[0], 'W2'), (9, w2[1], 'W2')]
        return r

    def stage(lg, order, gaps, nread=20):
        seen = set()
        for f, (cb, kk) in enumerate(order):
            if f + 3 < nread:
                c2, k2 = order[f + 3]
                w = wread(f + 3, c2, k2)
                gaps.setdefault(4 * f, []).insert(0, (w[0], 'W%d' % (f + 3)))
                gaps.setdefault(4 * f + 1, []).insert(0, (w[1], 'W%d' % (f + 3)))
        for f, (cb, kk) in enumerate(order):
            for sb in range(4):
                if sb == 0:
                    lg.wait('W%d' % f)
                if (kk, sb) not in seen:
                    seen.add((kk, sb))
                    lg.wait('X%d%d' % (kk, sb))
                a(mma(f, cb, kk, sb))
                for t, tag in gaps.get(4 * f + sb, []):
                    if t == 'BAR':
                        lg.all()
                        stamp(a, 'm0')
                        if DIAG:
                            a('s_add_u32 m0, m0, 1')
                        a('s_barrier')
                        stamp(a, 'm0')
                        if DIAG:
                            a('s_add_u32 m0, m0, 1')
                    elif tag:
                        lg.op(t, tag)
                    else:
                        a(t)

    stamp(a, 1)
    if SPF:
        a('s_lshl_b32 s%d, s2, 2' % T0)
        a('s_add_u32 s%d, s%d, s%d' % (T0, T0, W))
        a('s_mul_i32 s%d, s%d, 1792' % (T1, T0))
        a('s_add_u32 s%d, s%d, s%d' % (P_WD, P_WD, T1))
        a('s_addc_u32 s%d, s%d, 0' % (P_WD + 1, P_WD + 1))
        a('s_lshl_b32 s%d, s%d, 9' % (T1, T0))
        a('s_add_u32 s%d, s%d, s%d' % (P_WO, P_WO, T1))
        a('s_addc_u32 s%d, s%d, 0' % (P_WO + 1, P_WO + 1))
        for i in range(28):
            a('s_load_dword s3, %s, 0x%x' % (sr(P_WD, 2), i * 64))
        for i in range(8):
            a('s_load_dword s3, %s, 0x%x' % (sr(P_WO, 2), i * 64))
    a('s_barrier')
    stamp(a, 2)
    stamp(a, 58, True)
    if DIAG:
        a('s_mov_b32 m0, 3')
    lg = Cnt(a, 'lgkmcnt', 15)
    for _, t, tag in head_ops():
        lg.op(t, tag)
    a.raw('.p2align 3')
    a.label('k_loop')
    gaps = {}

    def add(g, t, tag=None):
        gaps.setdefault(g, []).append((t, tag))

    for sb in range(4):
        add(4 * (2 + sb) + 2, xread(1, sb), 'X1%d' % sb)
    add(3, 's_add_u32 s%d, s%d, 1' % (SLOTI, SLOTI))
    add(3, 's_cmp_eq_u32 s%d, 2' % SLOTI)
    add(3, 's_cselect_b32 s%d, 0x%x, %d' % (DELTA, (-2 * SLOT) & 0xffffffff, SLOT)) if False else None
    add(6, 's_mov_b32 s%d, %d' % (DELTA, SLOT))
    add(6, 's_cselect_b32 s%d, 0x%x, s%d' % (DELTA, (-2 * SLOT) & 0xffffffff, DELTA))
    add(7, 's_cmp_eq_u32 s%d, 3' % SLOTI)
    add(7, 's_cselect_b32 s%d, 0, s%d' % (SLOTI, SLOTI))
    for f, r in ((6, XA), (7, XA + 1), (9, KA), (10, KA + 1), (11, WA), (13, WA + 1), (15, WA + 2), (16, WA + 3)):
        add(4 * f + 2, 'v_add_u32 v%d, s%d, v%d' % (r, DELTA, r))
    add(4 * 16 + 3, 'BAR')
    for g, t, tag in head_ops():
        add(4 * 17 + g, t, tag)
    add(4 * 19 + 2, 's_add_u32 s%d, s%d, 1' % (CNT, CNT))
    add(4 * 19 + 2, 's_cmp_lt_u32 s%d, 7' % CNT)
    stage(lg, NORM, gaps)
    a('s_cbranch_scc1 k_loop')
    LAST = [(0, 0), (1, 0), (2, 0), (0, 1), (1, 1), (3, 0), (4, 0), (5, 0), (2, 1), (3, 1), (4, 1), (5, 1),
            (6, 0), (7, 0), (8, 0), (9, 0), (6, 1), (7, 1), (8, 1), (9, 1)]
    gaps = {}
    for sb in range(4):
        add(2 + sb + (sb >> 1) * 2, xread(1, sb), 'X1%d' % sb)
    fl = []
    TP = 16
    for g in range(4):
        for r in range(4):
            fl.append(('v_fma_f32 v%d, v%d, s%d, v%d' % (TP + 4 * g + r, ACC + 4 * g + r, L2E, NL), 1))
    for g in range(4):
        for r in range(4):
            fl.append(('v_exp_f32_e64 v%d, v%d clamp' % (TP + 4 * g + r, TP + 4 * g + r), 2))
        if g >= 1:
            for r in range(4):
                fl.append(('v_max_f32 v%d, v%d, v%d' % (TP + 4 * (g - 1) + r, TP + 4 * (g - 1) + r, ACC + 4 * (g - 1) + r), 1))
    for r in range(4):
        fl.append(('v_max_f32 v%d, v%d, v%d' % (TP + 12 + r, TP + 12 + r, ACC + 12 + r), 1))
    for r in range(16):
        fl.append(('v_add_f32 v%d, 0x%x, v%d' % (TP + r, EPS, TP + r), 1))
    for j in range(8):
        fl.append(('v_cvt_pk_bf16_f32 v%d, v%d, v%d' % (ACC + j, TP + 2 * j, TP + 2 * j + 1), 1))
    for j in range(8):
        fl.append(('v_cvt_pk_bf16_f32 v%d, v%d, v%d' % (ACC + 8 + j, ACC + 16 + 2 * j, ACC + 17 + 2 * j), 1))
    g = 4 * 4 + 3
    while fl:
        used = 1 if (g % 4) < 2 else 0
        while fl and used + fl[0][1] <= 3:
            t, c = fl.pop(0)
            add(g, t)
            used += c
        g += 1
    g += 1
    add(g, mf(TP + 4, ACC, ACC + 8, '0'))
    add(g + 1, mf(TP + 8, ACC, 6, '0'))
    add(g + 2, mf(TP + 4, ACC + 4, ACC + 12))
    add(g + 3, mf(TP + 8, ACC + 4, 6))
    g += 8
    add(g, 'ds_write_b128 v%d, %s' % (KW, vr(TP + 4, 4)), 'KW')
    add(g + 1, 'ds_write_b128 v%d, %s offset:1024' % (KW, vr(TP + 8, 4)), 'KW')
    gb = max(g + 3, 4 * 16 + 3)
    assert gb < 80, gb
    add(gb, 'BAR')
    stage(lg, LAST, gaps)
    stamp(a, 20)
    stamp(a, 59, True)
    if PRIO:
        a('s_setprio 3')
    a('s_lshl_b32 s%d, s%d, 2' % (T0, RT))
    a('s_add_u32 s%d, s%d, s%d' % (T0, T0, W))
    a('s_lshl_b32 s%d, s%d, 11' % (T3, T0))
    a('s_lshl_b32 s%d, s%d, 2' % (T2, CT))
    a('s_add_u32 s%d, s%d, s%d' % (T3, T3, T2))
    a('s_add_u32 s%d, s%d, 0x%x' % (T3, T3, WS_BLK))
    a('s_mul_i32 s%d, s%d, %d' % (T0, T0, 72 * 4096))
    a('s_cmp_ge_u32 s%d, 28' % CT)
    a('s_cbranch_scc1 k_epiQ')
    a('s_lshl_b32 s%d, s%d, 13' % (T1, CT))
    a('s_add_u32 s%d, s%d, s%d' % (T0, T0, T1))
    a('s_add_u32 s%d, s%d, 4096' % (T1, T0))
    for hf in range(2):
        for sb in range(4):
            gA, uA, gB, uB = (acc(2 + 4 * hf + k, sb) for k in range(4))
            for j in range(2):
                a('v_pk_mul_f32 %s, %s, %s' % (vr(gA + 2 * j, 2), vr(gA + 2 * j, 2), vr(uA + 2 * j, 2)))
                a('v_pk_mul_f32 %s, %s, %s' % (vr(gB + 2 * j, 2), vr(gB + 2 * j, 2), vr(uB + 2 * j, 2)))
            a('v_cvt_pk_bf16_f32 v%d, v%d, v%d' % (gA, gA, gA + 1))
            a('v_cvt_pk_bf16_f32 v%d, v%d, v%d' % (gA + 1, gA + 2, gA + 3))
            a('v_cvt_pk_bf16_f32 v%d, v%d, v%d' % (gA + 2, gB, gB + 1))
            a('v_cvt_pk_bf16_f32 v%d, v%d, v%d' % (gA + 3, gB + 2, gB + 3))
            a('buffer_store_dwordx4 %s, v5, %s, s%d offen offset:%d sc1' % (vr(gA, 4), sr(S_WS, 4), T0 + hf, sb * 1024))
    a('s_branch k_epiE')
    a.label('k_epiQ')
    a('s_sub_u32 s%d, s%d, 14' % (T1, CT))
    a('s_lshl_b32 s%d, s%d, 14' % (T1, T1))
    a('s_add_u32 s%d, s%d, s%d' % (T0, T0, T1))
    a('s_mov_b32 s%d, 0x%x' % (SW, EPS))
    a('s_mov_b32 s%d, 0x%x' % (SW + 1, EPS))
    a('s_mov_b32 s%d, 0x%x' % (SAB, LOG2E))
    a('s_mov_b32 s%d, 0x%x' % (SAB + 1, LOG2E))
    a('v_mov_b32 v%d, v%d' % (NL + 1, NL))
    pairs = [(2, 4), (6, 8), (3, 5), (7, 9)]
    for i, (cA, cB) in enumerate(pairs):
        for sb in range(4):
            rr = [acc(cA, sb), acc(cA, sb) + 2, acc(cB, sb), acc(cB, sb) + 2]
            tp = 16 + (sb & 1) * 8
            for j, r in enumerate(rr):
                a('v_pk_fma_f32 %s, %s, %s, %s' % (vr(tp + 2 * j, 2), vr(r, 2), sr(SAB, 2), vr(NL, 2)))
            for j in range(8):
                a('v_exp_f32_e64 v%d, v%d clamp' % (tp + j, tp + j))
            for j in range(8):
                a('v_max_f32 v%d, v%d, v%d' % (tp + j, tp + j, rr[j >> 1] + (j & 1)))
            for j in range(4):
                a('v_pk_add_f32 %s, %s, %s' % (vr(tp + 2 * j, 2), vr(tp + 2 * j, 2), sr(SW, 2)))
            for j in range(4):
                a('v_cvt_pk_bf16_f32 v%d, v%d, v%d' % (rr[0] + j, tp + 2 * j, tp + 2 * j + 1))
            a('buffer_store_dwordx4 %s, v5, %s, s%d offen offset:%d sc1' % (vr(rr[0], 4), sr(S_WS, 4), T0, sb * 1024))
        a('s_add_u32 s%d, s%d, 4096' % (T0, T0))
    a.label('k_epiE')
    stamp(a, 21)
    if B9 and not P1ONLY:
        a('s_barrier')
    VW2, TA = 84, 88
    a('v_mov_b32 v9, 1')
    if P1ONLY:
        a('s_waitcnt vmcnt(0)')
        a('s_mov_b64 exec, 1')
        a('buffer_store_dword v9, off, %s, s%d offset:%d sc1' % (sr(S_WS, 4), T3, O_F))
        a('s_mov_b64 exec, -1')
        stamp_out(a)
        a('s_endpgm')
        a.label('k_final')
        return
    w2_addr(a, VW2, TA, UB)
    a('v_mov_b32 v9, 1')
    a('s_lshl_b32 s%d, s%d, 17' % (SW, W))
    vm.op('; (h/pq stores)', 'ST')
    winc = ['s_add_u32 s%d, s%d, 32768' % (SW, SW)]
    for i in range(2):
        w2_dma(vm, a, VW2, 4096 * i, 'W%d' % i, winc)
    vm.wait('ST')
    a('s_mov_b64 exec, 1')
    vm.op('buffer_store_dword v9, off, %s, s%d offset:%d sc1' % (sr(S_WS, 4), T3, O_F), 'F')
    a('s_mov_b64 exec, -1')
    stamp(a, 22)
    stamp(a, 57, True)
    if PRIO:
        a('s_setprio 0')
    for i in range(2, 4):
        w2_dma(vm, a, VW2, 4096 * i, 'W%d' % i, winc)
    PQ, KVF, ZF, KVB, ZB = 96, 160, 16, 32, 48
    ACC2 = 192
    ND = 64
    for r in range(64):
        a('v_mov_b32 v%d, 0' % (ACC2 + r))
    a('v_and_b32 v2, 31, v1')
    a('v_lshlrev_b32 v2, 2, v2')
    a('s_lshl_b32 s%d, s%d, 11' % (T0, RT2))
    a('s_add_u32 s%d, s%d, 0x%x' % (T0, T0, WS_BLK))
    a('s_add_u32 s%d, s%d, 28' % (T1, W))
    a('v_lshrrev_b32 v6, 3, v1')
    a('v_and_b32 v7, 7, v1')
    a('v_lshlrev_b32 v7, 4, v7')
    a('v_lshl_add_u32 v92, v6, 11, v7')
    a('v_bfe_u32 v6, v4, 1, 1')
    a('v_lshlrev_b32 v7, 4, v3')
    a('v_lshl_add_u32 v93, v6, 11, v7')
    a('v_cmp_ne_u32 s[%d:%d], 0, v6' % (SAB, SAB + 1))
    a('s_lshl_b32 s%d, s%d, 14' % (T2, W))
    a('s_add_u32 s%d, s%d, 0x%x' % (T2, T2, WS_BLK))
    a('s_mul_i32 s%d, s%d, 72' % (SA, RT2))
    a('s_lshl_b32 s%d, s%d, 2' % (T3, W))
    a('s_add_u32 s%d, s%d, s%d' % (SA, SA, T3))
    a('s_add_u32 s%d, s%d, 56' % (SA, SA))
    a('s_lshl_b32 s%d, s%d, 12' % (SA, SA))
    poll(a, vm, 'k_pollQ', ['buffer_load_dword v9, v2, %s, s%d offen offset:%d sc1' % (sr(S_WS, 4), T0, O_F)],
         ['v_cmp_ne_u32 vcc, 0, v9', 's_bitcmp1_b32 vcc_lo, s%d' % T1])
    stamp(a, 23)
    for i in range(4):
        for sb in range(4):
            vm.op('buffer_load_dwordx4 %s, v5, %s, s%d offen offset:%d sc1' % (vr(PQ + 16 * i + 4 * sb, 4), sr(S_WS, 4), SA, sb * 1024), 'PQ')
        a('s_add_u32 s%d, s%d, 4096' % (SA, SA))
    g_load(a, vm, GV)
    poll(a, vm, 'k_pollK', ['buffer_load_dwordx4 v[64:67], v92, %s, s%d offen offset:%d sc1' % (sr(S_WS, 4), T2, O_KF)],
         ['v_and_b32 v64, v64, v65', 'v_and_b32 v66, v66, v67', 'v_and_b32 v64, v64, v66',
          'v_cmp_ne_u32 vcc, 0, v64', 's_cmp_eq_u64 vcc, -1'])
    stamp(a, 24)
    for i in range(4):
        vm.op('buffer_load_dwordx4 %s, v5, %s, s%d offen sc1' % (vr(KVF + 8 * i, 4), sr(S_WS, 4), T2), 'K%d' % i)
        vm.op('buffer_load_dwordx4 %s, v5, %s, s%d offen offset:2048 sc1' % (vr(KVF + 8 * i + 4, 4), sr(S_WS, 4), T2), 'K%d' % i)
        vm.op('buffer_load_dwordx4 %s, v93, %s, s%d offen offset:%d sc1' % (vr(ZF + 4 * i, 4), sr(S_WS, 4), T2, O_Z), 'K%d' % i)
        a('s_add_u32 s%d, s%d, 4096' % (T2, T2))
    lg = Cnt(a, 'lgkmcnt', 15)
    WF = 64
    for i in range(4):
        vm.wait('K%d' % i)
        for j in range(4):
            a('v_cvt_pk_bf16_f32 v%d, v%d, v%d' % (KVB + 4 * i + j, KVF + 8 * i + 2 * j, KVF + 8 * i + 2 * j + 1))
        a('v_cvt_pk_bf16_f32 v%d, v%d, v%d' % (ZF + 4 * i, ZF + 4 * i, ZF + 4 * i + 1))
        a('v_cvt_pk_bf16_f32 v%d, v%d, v%d' % (ZF + 4 * i + 1, ZF + 4 * i + 2, ZF + 4 * i + 3))
        for j in range(2):
            a('v_cndmask_b32 v%d, v%d, 0, s[%d:%d]' % (ZB + 4 * i + j, ZF + 4 * i + j, SAB, SAB + 1))
            a('v_cndmask_b32 v%d, 0, v%d, s[%d:%d]' % (ZB + 4 * i + 2 + j, ZF + 4 * i + j, SAB, SAB + 1))
    stamp(a, 25)
    NDR = [160, 172, 16, 180]
    NDR = [160, 172, 16, None]
    NDREG = [(160, 164, 168), (172, 176, 180), (184, 188, 16), (20, 24, 28)]
    for i in range(4):
        for r in w2_reads(TA, WF, 4096 * i):
            lg.op(r, 'R%d' % i)
        for sb in range(4):
            nA, nB, dn = NDREG[sb]
            pq = PQ + 16 * i + 4 * sb
            a(mf(dn, ZB + 4 * i, pq, '0'))
            a(mf16(nA, KVB + 4 * i, pq, '0'))
            a(mf16(nB, KVB + 4 * i + 2, pq + 2, '0'))
        for sb in range(4):
            nA, nB, dn = NDREG[sb]
            a('v_add_f32 v%d, 0x%x, v%d' % (dn, EPS, dn))
            a('v_add_f32 v%d, 0x%x, v%d' % (dn + 2, EPS, dn + 2))
            a('v_rcp_f32 v%d, v%d' % (dn, dn))
            a('v_rcp_f32 v%d, v%d' % (dn + 2, dn + 2))
        for sb in range(4):
            nA, nB, dn = NDREG[sb]
            pq = PQ + 16 * i + 4 * sb
            for j in range(2):
                a('v_pk_mul_f32 %s, %s, %s op_sel_hi:[1,0]' % (vr(nA + 2 * j, 2), vr(nA + 2 * j, 2), vr(dn, 2)))
                a('v_pk_mul_f32 %s, %s, %s op_sel_hi:[1,0]' % (vr(nB + 2 * j, 2), vr(nB + 2 * j, 2), vr(dn + 2, 2)))
            a('v_cvt_pk_bf16_f32 v%d, v%d, v%d' % (pq, nA, nA + 1))
            a('v_cvt_pk_bf16_f32 v%d, v%d, v%d' % (pq + 1, nA + 2, nA + 3))
            a('v_cvt_pk_bf16_f32 v%d, v%d, v%d' % (pq + 2, nB, nB + 1))
            a('v_cvt_pk_bf16_f32 v%d, v%d, v%d' % (pq + 3, nB + 2, nB + 3))
        lg.all()
        for cb in range(4):
            for sb in range(4):
                a(mf(ACC2 + (cb * 4 + sb) * 4, WF + 4 * cb, PQ + 16 * i + 4 * sb))
    stamp(a, 36)
    part_write(a, ACC2, [0, 4096, 8192, 12288])
    a('s_waitcnt lgkmcnt(0)')
    stamp(a, 37)
    a('s_barrier')
    stamp(a, 38)
    a.label('k_final')
    final(a, GV)
    stamp_out(a)


def kd(a, name, vgpr, sgpr):
    a.raw('.p2align 6')
    a.raw('.amdhsa_kernel %s' % name)
    a.raw('  .amdhsa_next_free_vgpr %d' % vgpr)
    a.raw('  .amdhsa_next_free_sgpr %d' % sgpr)
    a.raw('  .amdhsa_accum_offset %d' % ((vgpr + 3) // 4 * 4))
    a.raw('  .amdhsa_group_segment_fixed_size 0')
    a.raw('  .amdhsa_kernarg_size 88')
    a.raw('  .amdhsa_user_sgpr_count 2')
    a.raw('  .amdhsa_user_sgpr_kernarg_segment_ptr 1')
    a.raw('  .amdhsa_system_sgpr_workgroup_id_x 1')
    a.raw('.end_amdhsa_kernel')


def main(out):
    a = Asm()
    hdr = open('cdna_kernels/%s.s.ref' % NAME).read().split('\n')
    for line in hdr:
        if line.startswith(';') and '@launch' not in line and 'Override launch' not in line and 'grid=ceil' not in line:
            a.raw(line)
    a.raw('; @launch grid=(256,1,1) block=(512,1,1) lds=%d' % LDS)
    a.raw('.amdgcn_target "amdgcn-amd-amdhsa--gfx950"')
    a.raw('.text')
    gen(a)
    n = a.fix(verbose=bool(env('VERB', 0)))
    a.raw('.section .rodata,"a"')
    kd(a, NAME + '_kernel', 256, 100)
    open(out, 'w').write(a.text())
    print('pads inserted:', n, 'lines', len(a.l))


if __name__ == '__main__':
    main(sys.argv[1])
```

```python
import sys, os
from asmlib import Asm, Cnt, vr, sr

NAME = 'gated_mix__linear_attn_block__glu_gated_bilinear__prompt'


def env(k, d):
    return type(d)(os.environ.get(k, d))


DIAG = env('DIAG', 0)
SCHED = env('SCHED', 'b')
PRE = env('PRE', 8)
CPF = env('CPF', 1)
SPF = env('SPF', '1234')
SLEEP = env('SLEEP', 2)
ROTJ = env('ROTJ', 1)
NPRE = env('NPRE', 3)
QLAG = env('QLAG', 7)
QBAR = env('QBAR', 4)
GST = env('GST', 5)
PR7 = env('PR7', 1)
PC2 = env('PC2', 1)
P1AT = env('P1AT', 1)
FILL = env('FILL', 2)
OUTM = env('OUTM', 'sc1')
TPOS = env('TPOS', 0)
KI = 3

WS_BLK = 0x00A00000
WS_STAMP = 0x00C00000
WS_SIZE = 0x01000000
B_FL, B_G, B_Z, B_KF = WS_BLK + 32768, WS_BLK + 49152, WS_BLK + 57344, WS_BLK + 59392
LST = env('LST', 0)

LOG2E = 0x3FB8AA3B
NLOG2E = 0xBFB8AA3B
EPS = 0x358637BD
ONES = 0x3F803F80
TINY = 0x2B800000

SLOT = 53248
SLOTB = [57344, 110592, 4096]
WREG = 32768
TG = 5120
LDS = 163840
UA, UBB, UC = 0, SLOT, 2 * SLOT
L_LF, L_RF, L_S, L_KC = 2048, 2064, 2560, 2304
NS, NC = 9, 5
UNIT = {'S0': UA, 'S1': UA + 4096, 'S2': UA + 8192, 'S3': UBB, 'S4': UBB + 4096, 'S5': UBB + 8192,
        'S6': UA, 'S7': UA + 4096, 'S8': UA + 8192, 'C0': UBB, 'C1': UBB + 4096, 'C2': UBB + 8192,
        'C3': UC, 'C4': UC + 4096, 'O0': UC + 8192, 'O1': UA, 'O2': UA + 4096, 'O3': UA + 8192}
PART_L = [UBB, UBB + 4096, UBB + 8192, UC]
PART_C = [UC + 4096, UC + 8192, UA, UA + 4096]

P_X, P_QKV, P_WO, P_BX, P_WG, P_WU, P_WD, P_GW, P_OUT, P_DBG, P_WS = 4, 6, 8, 10, 12, 14, 16, 18, 20, 22, 24
S_X, S_G, S_U, S_KV, S_WS, S_T, S_GW, S_W2, S_OUT, S_DBG = 28, 32, 36, 40, 44, 48, 52, 56, 60, 64
RT, CT, WV, RT2, CT2, RB, GOFF, UOFF = 68, 69, 70, 71, 72, 73, 74, 75
T0, T1, T2, T3 = 76, 77, 78, 79
SX, SG, SKV, SGS, XL, WL, STO, STS = 80, 81, 82, 83, 84, 85, 86, 87
DELTA, CNT, SLOTI, L2E, STB, STB2, FLA, INITF = 80, 81, 82, 83, 84, 85, 86, 87
SW, SWB, SWE, SA, SAB, SAE, UB, MASK = 88, 89, 90, 91, 92, 93, 94, 95
PC = 26
W = 27
FI = 10
BLK = 11
STV = 14
POLLS = 0x4000


def srd(a, d, ptr, nbytes):
    a('s_mov_b32 s%d, s%d' % (d, ptr))
    a('s_and_b32 s%d, s%d, 0xffff' % (d + 1, ptr + 1))
    if isinstance(nbytes, str):
        a('s_mov_b32 s%d, %s' % (d + 2, nbytes))
    else:
        a('s_mov_b32 s%d, 0x%x' % (d + 2, nbytes))
    a('s_mov_b32 s%d, 0x00020000' % (d + 3))


def mf(d, x, y, c=None):
    cc = vr(d, 4) if c is None else c
    return 'v_mfma_f32_16x16x32_bf16 %s, %s, %s, %s' % (vr(d, 4), vr(x, 4), vr(y, 4), cc)


def mf16(d, x, y, c=None):
    cc = vr(d, 4) if c is None else c
    return 'v_mfma_f32_16x16x16_bf16 %s, %s, %s, %s' % (vr(d, 4), vr(x, 2), vr(y, 2), cc)


def stamp(a, idx, real=False):
    if not DIAG:
        return
    a('%s s[96:97]' % ('s_memrealtime' if real else 's_memtime'))
    a('s_waitcnt lgkmcnt(0)')
    a('v_writelane_b32 v%d, s96, %s' % (STV, idx))


def stamp_out(a):
    if not DIAG:
        return
    a('s_waitcnt vmcnt(0)')
    stamp(a, 61)
    stamp(a, 63, True)
    a('s_lshl_b32 s98, s2, 3')
    a('s_add_u32 s98, s98, s%d' % WV)
    a('s_lshl_b32 s98, s98, 8')
    a('s_add_u32 s98, s98, 0x%x' % WS_STAMP)
    a('v_lshlrev_b32 v2, 2, v1')
    a('s_nop 4')
    a('buffer_store_dword v%d, v2, %s, s98 offen' % (STV, sr(S_WS, 4)))


COLD = []
NL_ = [0]


def uniq(p):
    NL_[0] += 1
    return '%s%d' % (p, NL_[0])


def slow(name, body, test):
    r = [name + ':', 's_mov_b32 s%d, 0x%x' % (PC, POLLS), name + '_l:']
    r += body + test
    r += ['s_cbranch_scc1 %s_ok' % name, 's_sleep %d' % SLEEP, 's_sub_u32 s%d, s%d, 1' % (PC, PC),
          's_cbranch_scc0 %s_l' % name, 's_branch %s_ok' % name]
    COLD.append(r)


def fl_load(d):
    return 'buffer_load_dword v%d, v2, %s, s%d offen sc1' % (d, sr(S_WS, 4), BLK)


def ensure(a, d, bit):
    n = uniq('k_e')
    a('s_bitcmp1_b32 s%d, %s' % (MASK, bit))
    a('s_cbranch_scc0 %s' % n)
    a.label(n + '_ok')
    slow(n, [fl_load(d), 's_waitcnt vmcnt(0)', 'v_cmp_ne_u32 vcc, 0, v%d' % d, 's_mov_b32 s%d, vcc_lo' % MASK],
         ['s_bitcmp1_b32 s%d, %s' % (MASK, bit)])


def lds_ensure(a, known, addr, off, d, val):
    n = uniq('k_w')
    a('s_cmp_ge_u32 s%d, %d' % (known, val))
    a('s_cbranch_scc0 %s' % n)
    a.label(n + '_ok')
    r = [n + ':', 's_mov_b32 s%d, 0x%x' % (PC, POLLS * 4), n + '_l:',
         'ds_read_b32 v%d, v%d offset:%d' % (d, addr, off), 's_waitcnt lgkmcnt(0)',
         'v_readfirstlane_b32 s%d, v%d' % (known, d), 's_cmp_ge_u32 s%d, %d' % (known, val),
         's_cbranch_scc1 %s_ok' % n, 's_sleep 1', 's_sub_u32 s%d, s%d, 1' % (PC, PC),
         's_cbranch_scc0 %s_l' % n, 's_branch %s_ok' % n]
    COLD.append(r)


def ta_addr(a, TA, t):
    a('v_lshrrev_b32 v%d, 2, v1' % t)
    a('v_lshl_add_u32 v%d, v%d, 7, s%d' % (t, t, UB))
    a('v_and_b32 v%d, 3, v1' % (t + 1))
    a('v_lshl_add_u32 v%d, v%d, 3, v%d' % (t, t + 1, t))
    a('v_bfe_u32 v%d, v1, 3, 2' % (t + 1))
    for cb in range(4):
        a('v_xor_b32 v%d, %d, v%d' % (t + 2, cb, t + 1))
        a('v_lshl_add_u32 v%d, v%d, 5, v%d' % (TA + cb, t + 2, t))


def w2_reads(TA, dst, unit):
    r = []
    for cb in range(4):
        r.append('ds_read_b64_tr_b16 %s, v%d offset:%d' % (vr(dst + 4 * cb, 2), TA + cb, unit))
        r.append('ds_read_b64_tr_b16 %s, v%d offset:%d' % (vr(dst + 4 * cb + 2, 2), TA + cb, unit + 2048))
    return r


def p2_scalars(a, first):
    a('s_mul_i32 s%d, s%d, 12288' % (UB, W))
    a('s_add_u32 s%d, s%d, 4096' % (UB, UB))
    a('s_lshl_b32 s%d, s%d, 2' % (BLK, RT2))
    a('s_add_u32 s%d, s%d, s%d' % (BLK, BLK, W))
    a('s_lshl_b32 s%d, s%d, 7' % (BLK, BLK))
    a('s_add_u32 s%d, s%d, 0x%x' % (BLK, BLK, B_FL))
    a('s_and_b32 s%d, s%d, %d' % (T0, RT2, 3 if ROTJ else 0))
    a('s_lshl_b32 s%d, s%d, 1' % (T0, T0))
    a('s_add_u32 s%d, s%d, s%d' % (T0, T0, CT2))
    a('s_mul_i32 s%d, s%d, 7' % (T0, T0))
    a('s_lshr_b32 s%d, s%d, 2' % (T0, T0))
    a('s_sub_u32 s%d, s%d, 14' % (T1, T0))
    a('s_cselect_b32 s%d, s%d, s%d' % (T0, T0, T1))
    if first:
        a('s_add_u32 s%d, s%d, %d' % (T0, T0, first))
        a('s_sub_u32 s%d, s%d, 14' % (T1, T0))
        a('s_cselect_b32 s%d, s%d, s%d' % (T0, T0, T1))
    a('s_mul_i32 s%d, s%d, 14' % (T1, W))
    a('s_mul_i32 s%d, s%d, 72' % (T2, RT2))
    a('s_add_u32 s%d, s%d, s%d' % (T2, T2, T1))
    a('s_lshl_b32 s%d, s%d, 12' % (SAB, T2))
    a('s_add_u32 s%d, s%d, %d' % (SAE, SAB, 14 * 4096))
    a('s_lshl_b32 s%d, s%d, 12' % (T2, T0))
    a('s_add_u32 s%d, s%d, s%d' % (SA, SAB, T2))
    a('v_and_b32 v2, 31, v1')
    a('v_lshlrev_b32 v2, 2, v2')
    a('s_mov_b32 s%d, 0' % MASK)


AINC = ['s_add_u32 s%d, s%d, 4096' % (SA, SA), 's_cmp_eq_u32 s%d, s%d' % (SA, SAE),
        's_cselect_b32 s%d, s%d, s%d' % (SA, SAB, SA)]


def a_load(a, vm, g, tag, pd):
    a('s_sub_u32 s%d, s%d, s%d' % (T0, SA, SAB))
    a('s_lshr_b32 s%d, s%d, 12' % (T0, T0))
    ensure(a, pd, 's%d' % T0)
    for sb in range(4):
        vm.op('buffer_load_dwordx4 %s, v5, %s, s%d offen offset:%d sc1' % (vr(g + 4 * sb, 4), sr(S_WS, 4), SA, sb * 1024), tag)
    a(AINC)


def part_addr(a, t, hi):
    a('v_and_b32 v%d, 7, v1' % t)
    a('v_xor_b32 v%d, v%d, v3' % (t, t))
    a('v_lshl_add_u32 v%d, v4, 8, s%d' % (t + 1, UB))
    a('v_lshl_add_u32 v%d, v%d, 4, v%d' % (t, t, t + 1))
    a('v_xor_b32 v%d, 64, v%d' % (t + 1, t))
    a('v_add_u32 v%d, 0x%x, v%d' % (t + 2, hi, t))
    a('v_add_u32 v%d, 0x%x, v%d' % (t + 3, hi, t + 1))


def part_w(t, hi, ACC2, units, cb, sb):
    u = units[sb]
    ad = t + (cb & 1)
    if u >= hi:
        u -= hi
        ad += 2
    return 'ds_write_b128 v%d, %s offset:%d' % (ad, vr(ACC2 + (cb * 4 + sb) * 4, 4), u + (cb >> 1) * 128)


def final_addr(a, t):
    a('s_lshr_b32 s%d, s%d, 1' % (T0, WV))
    a('s_lshl_b32 s%d, s%d, 12' % (T1, T0))
    a('s_add_u32 s%d, s%d, %d' % (T2, T1, 4096 + UC + 4096))
    a('s_sub_u32 s%d, s%d, %d' % (T3, T1, 8192 - 4096))
    a('s_cmp_ge_u32 s%d, 2' % T0)
    a('s_cselect_b32 s%d, s%d, s%d' % (T2, T3, T2))
    a('s_add_u32 s%d, s%d, %d' % (T1, T1, 4096 + UBB))
    a('s_cmp_eq_u32 s%d, 3' % T0)
    a('s_cselect_b32 s%d, %d, s%d' % (T1, 4096 + UC, T1))
    a('s_lshl_b32 s%d, s%d, 2' % (T3, T0))
    a('s_and_b32 s%d, s%d, 1' % (T0, WV))
    a('s_lshl_b32 s%d, s%d, 7' % (PC, T0))
    a('s_add_u32 s%d, s%d, s%d' % (T3, T3, PC))
    a('s_lshl_b32 s%d, s%d, 11' % (T0, T0))
    a('v_lshrrev_b32 v%d, 3, v1' % (t + 5))
    a('v_lshl_add_u32 v%d, v%d, 4, s%d' % (t + 4, t + 5, T3))
    a('v_and_b32 v%d, 7, v1' % (t + 3))
    a('v_lshlrev_b32 v%d, 1, v%d' % (t + 1, t + 3))
    a('v_xor_b32 v%d, v%d, v%d' % (t + 1, t + 1, t + 5))
    a('v_lshl_add_u32 v%d, v%d, 8, s%d' % (t, t + 5, T0))
    a('v_lshl_add_u32 v%d, v%d, 4, v%d' % (t, t + 1, t))
    a('v_lshlrev_b32 v%d, 4, v%d' % (t + 3, t + 3))
    a('v_lshl_add_u32 v%d, v%d, 10, v%d' % (t + 5, t + 5, t + 3))
    a('v_xor_b32 v%d, 16, v%d' % (t + 1, t))
    a('v_add_u32 v%d, s%d, v%d' % (t + 2, T2, t))
    a('v_add_u32 v%d, s%d, v%d' % (t + 3, T2, t + 1))
    a('v_add_u32 v%d, s%d, v%d' % (t, T1, t))
    a('v_add_u32 v%d, s%d, v%d' % (t + 1, T1, t + 1))
    a('s_lshl_b32 s%d, s%d, 3' % (T0, RT2))
    a('s_add_u32 s%d, s%d, s%d' % (T0, T0, WV))
    a('s_lshl_b32 s%d, s%d, 13' % (T0, T0))
    a('s_lshl_b32 s%d, s%d, 7' % (T1, CT2))
    a('s_add_u32 s%d, s%d, s%d' % (T3, T0, T1))


FA = 6


def final(a):
    R = 64
    for p in range(8):
        for hf in range(2):
            a('ds_read_b128 %s, v%d offset:%d' % (vr(R + (p * 2 + hf) * 4, 4), FA + (0 if p < 4 else 2) + hf, 12288 * (p & 3)))
        if p == 6:
            a('s_waitcnt lgkmcnt(10)')
            for j in range(4):
                a('v_pk_add_f32 %s, %s, %s' % (vr(R + 2 * j, 2), vr(R + 2 * j, 2), vr(R + 8 + 2 * j, 2)))
    a('ds_read_b32 v12, v%d offset:%d' % (FA + 4, L_S))
    for p in range(2, 8):
        a('s_waitcnt lgkmcnt(%d)' % (15 - p * 2))
        for j in range(4):
            a('v_pk_add_f32 %s, %s, %s' % (vr(R + 2 * j, 2), vr(R + 2 * j, 2), vr(R + p * 8 + 2 * j, 2)))
    a('s_waitcnt lgkmcnt(0)')
    for j in range(4):
        a('v_pk_mul_f32 %s, %s, v[12:13] op_sel_hi:[1,0]' % (vr(R + 2 * j, 2), vr(R + 2 * j, 2)))
    for j in range(4):
        a('v_cvt_pk_bf16_f32 v%d, v%d, v%d' % (16 + j, R + 2 * j, R + 2 * j + 1))
    a('buffer_store_dwordx4 v[16:19], v%d, %s, s%d offen %s' % (FA + 5, sr(S_OUT, 4), T3, OUTM))


def gen(a):
    K = NAME + '_kernel'
    a.raw('.globl %s' % K)
    a.raw('.p2align 12')
    a.raw('.type %s,@function' % K)
    a.label(K)
    a('s_cmp_ge_u32 s2, 256')
    a('s_cbranch_scc1 k_end')
    if DIAG:
        a('v_mov_b32 v%d, 0' % STV)
    stamp(a, 0)
    stamp(a, 62, True)
    a('s_load_dwordx16 s[4:19], s[0:1], 0')
    a('s_load_dwordx4 s[20:23], s[0:1], 64')
    a('s_load_dwordx2 s[24:25], s[0:1], 80')
    if CPF:
        a('s_getpc_b64 s[98:99]')
        a.label('k_pc')
        a('v_xor_b32 v2, 0x100, v0')
        a('v_lshlrev_b32 v2, 7, v2')
        a('v_min_u32 v2, k_last-k_pc, v2')
        a('global_load_dword v94, v2, s[98:99]')
    a('v_lshrrev_b32 v2, 6, v0')
    a('v_and_b32 v1, 63, v0')
    a('v_readfirstlane_b32 s%d, v2' % WV)
    a('s_and_b32 s%d, s2, 7' % T0)
    a('s_lshr_b32 s%d, s2, 3' % T1)
    a('s_and_b32 s%d, s%d, 1' % (T2, T0))
    a('s_lshl_b32 s%d, s%d, 2' % (T2, T2))
    a('s_and_b32 s%d, s%d, 3' % (T3, T1))
    a('s_add_u32 s%d, s%d, s%d' % (RT, T2, T3))
    a('s_lshl_b32 s%d, s%d, 2' % (RT2, T0))
    a('s_add_u32 s%d, s%d, s%d' % (RT2, RT2, T3))
    a('s_lshr_b32 s%d, s%d, 1' % (T2, T0))
    a('s_lshl_b32 s%d, s%d, 3' % (T3, T2))
    a('s_lshr_b32 s%d, s%d, 2' % (CT2, T1))
    a('s_add_u32 s%d, s%d, s%d' % (CT, T3, CT2))
    a('s_sub_u32 s%d, s%d, s%d' % (T0, CT, T2))
    a('s_sub_u32 s%d, s%d, 1' % (T0, T0))
    a('s_lshl_b32 s%d, s%d, 7' % (T0, T0))
    a('s_lshl_b32 s%d, s%d, 8' % (T1, T2))
    a('s_add_u32 s%d, s%d, 128' % (T2, T1))
    a('s_cmp_eq_u32 s%d, 0' % CT2)
    a('s_cselect_b32 s%d, s%d, s%d' % (GOFF, T1, T0))
    a('s_cselect_b32 s%d, s%d, s%d' % (UOFF, T2, T0))
    a('s_and_b32 s%d, s%d, 3' % (W, WV))
    a('v_lshrrev_b32 v3, 4, v1')
    a('v_and_b32 v4, 15, v1')
    a('v_lshlrev_b32 v5, 4, v1')
    a('s_cmp_ge_u32 s%d, 4' % WV)
    a('s_cbranch_scc1 k_C')
    gen_loader(a)
    gen_compute(a)
    a.label('k_end')
    a('s_endpgm')
    for blk in COLD:
        for l in blk:
            if l.endswith(':'):
                a.label(l[:-1])
            else:
                a(l)
    a.label('k_last')
    a('s_endpgm')


def gen_loader(a):
    vm = Cnt(a, 'vmcnt', 63)
    lg = Cnt(a, 'lgkmcnt', 15)
    VX, VG, VU, VKV, VT = 32, 40, 42, 44, 45
    TD = 24
    DBV = 28
    VW2, TA = 6, 10
    a('s_setprio 3')
    a('s_cmp_eq_u32 s%d, 0' % CT2)
    a('s_cselect_b32 s%d, 6, 7' % RB)
    a('s_lshl_b32 s%d, s%d, 9' % (RB, RB))
    a('v_lshrrev_b32 v2, 5, v1')
    a('s_cmp_eq_u32 s%d, 0' % WV)
    a('s_cbranch_scc1 k_tx')
    a('s_cmp_eq_u32 s%d, 3' % WV)
    a('s_cbranch_scc1 k_tkv')
    a('s_and_b32 s%d, s%d, 3' % (T0, RT))
    a('s_lshl_b32 s%d, s%d, 4' % (T0, T0))
    a('v_lshl_add_u32 v%d, v2, 6, s%d' % (VT, T0))
    a('v_add_u32 v%d, v%d, v4' % (VT, VT))
    a('v_mul_lo_u32 v%d, v%d, s%d' % (VT, VT, RB))
    a('s_lshl_b32 s%d, s%d, 7' % (STS, RB))
    a('s_cmp_eq_u32 s%d, 1' % WV)
    a('s_cselect_b32 s%d, s%d, s%d' % (STO, GOFF, UOFF))
    a('s_waitcnt lgkmcnt(0)')
    a('s_cselect_b64 s[%d:%d], s[%d:%d], s[%d:%d]' % (S_T, S_T + 1, P_WG, P_WG + 1, P_WU, P_WU + 1))
    a('s_cmp_eq_u32 s%d, 0' % CT2)
    a('s_cselect_b64 s[%d:%d], s[%d:%d], s[%d:%d]' % (S_T, S_T + 1, P_QKV, P_QKV + 1, S_T, S_T + 1))
    a('s_lshl_b32 s%d, s%d, 9' % (S_T + 2, RB))
    a('s_branch k_tgo')
    a.label('k_tx')
    a('s_lshl_b32 s%d, s%d, 3' % (T0, RT))
    a('s_add_u32 s%d, s%d, s%d' % (T0, T0, CT2))
    a('s_lshl_b32 s%d, s%d, 15' % (STO, T0))
    a('v_and_b32 v6, 31, v1')
    a('v_lshlrev_b32 v%d, 10, v6' % VT)
    a('v_lshl_add_u32 v%d, v2, 7, v%d' % (VT, VT))
    a('s_mov_b32 s%d, 256' % STS)
    a('s_mov_b32 s%d, 0x%x' % (S_T + 2, 2048 * 1024))
    a('s_waitcnt lgkmcnt(0)')
    a('s_mov_b64 s[%d:%d], s[%d:%d]' % (S_T, S_T + 1, P_X, P_X + 1))
    a('s_branch k_tgo')
    a.label('k_tkv')
    a('s_and_b32 s%d, s%d, 3' % (T0, RT))
    a('s_lshl_b32 s%d, s%d, 2' % (T0, T0))
    a('s_and_b32 s%d, s%d, 3' % (T2, CT))
    a('s_add_u32 s%d, s%d, s%d' % (T0, T0, T2))
    a('s_lshl_b32 s%d, s%d, 2' % (T0, T0))
    a('v_lshl_add_u32 v%d, v2, 6, s%d' % (VT, T0))
    a('v_and_b32 v6, 3, v4')
    a('v_add_u32 v%d, v%d, v6' % (VT, VT))
    a('v_mul_u32_u24 v%d, 3072, v%d' % (VT, VT))
    a('v_bfe_u32 v6, v4, 2, 1')
    a('v_lshl_add_u32 v%d, v6, 10, v%d' % (VT, VT))
    a('s_lshr_b32 s%d, s%d, 2' % (T2, CT))
    a('s_lshl_b32 s%d, s%d, 7' % (T2, T2))
    a('s_add_u32 s%d, s%d, 1024' % (STO, T2))
    a('s_mov_b32 s%d, 0x%x' % (STS, 128 * 3072))
    a('s_mov_b32 s%d, 0x%x' % (S_T + 2, 512 * 3072))
    a('s_waitcnt lgkmcnt(0)')
    a('s_mov_b64 s[%d:%d], s[%d:%d]' % (S_T, S_T + 1, P_QKV, P_QKV + 1))
    a.label('k_tgo')
    a('s_and_b32 s%d, s%d, 0xffff' % (S_T + 1, S_T + 1))
    a('s_mov_b32 s%d, 0x00020000' % (S_T + 3))
    tcount = [0]

    def touch():
        p = tcount[0]
        tcount[0] += 1
        vm.op('buffer_load_dword v%d, v%d, %s, s%d offen' % (TD + p, VT, sr(S_T, 4), STO), 'T%d' % p)
        a('s_add_u32 s%d, s%d, s%d' % (STO, STO, STS))

    NT0 = {'a': 2, 'n': 0, 'b': 1, 'c': 4}[SCHED[0]]
    for _ in range(NT0):
        touch()
    a('v_lshrrev_b32 v6, 3, v1')
    a('v_and_b32 v7, 7, v1')
    a('v_xor_b32 v17, v7, v3')
    a('v_xor_b32 v18, 4, v17')
    a('s_lshl_b32 s%d, s%d, 8' % (T0, RT))
    a('s_lshl_b32 s%d, s%d, 6' % (T1, WV))
    a('s_add_u32 s%d, s%d, s%d' % (T0, T0, T1))
    a('s_lshl_b32 s%d, s%d, 10' % (T0, T0))
    a('v_lshl_add_u32 v19, v6, 10, s%d' % T0)
    a('v_lshl_add_u32 v20, v17, 4, v19')
    a('v_lshl_add_u32 v21, v18, 4, v19')
    for jj in range(8):
        a('v_add_u32 v%d, 0x%x, v%d' % (VX + jj, jj * 8192 - (jj & 3) * 1024, 20 + (jj & 1)))
    a('s_lshl_b32 s%d, s%d, 4' % (T0, WV))
    a('v_add_u32 v19, s%d, v6' % T0)
    a('v_mul_lo_u32 v19, v19, s%d' % RB)
    a('v_and_b32 v20, 1, v7')
    a('v_lshl_add_u32 v19, v20, 4, v19')
    a('v_lshrrev_b32 v20, 1, v7')
    a('v_and_b32 v21, 1, v3')
    a('v_xor_b32 v20, v20, v21')
    a('v_xor_b32 v21, 2, v20')
    a('v_lshl_add_u32 v20, v20, 5, v19')
    a('v_lshl_add_u32 v21, v21, 5, v19')
    a('s_lshl_b32 s%d, s%d, 3' % (T1, RB))
    a('s_sub_u32 s%d, s%d, 1024' % (T1, T1))
    a('v_add_u32 v21, s%d, v21' % T1)
    a('v_add_u32 v%d, s%d, v20' % (VG, GOFF))
    a('v_add_u32 v%d, s%d, v21' % (VG + 1, GOFF))
    a('v_add_u32 v%d, s%d, v20' % (VU, UOFF))
    a('v_add_u32 v%d, s%d, v21' % (VU + 1, UOFF))
    a('v_lshrrev_b32 v19, 2, v1')
    a('v_add_u32 v19, s%d, v19' % T0)
    a('v_mul_u32_u24 v19, 3072, v19')
    a('v_bfe_u32 v20, v1, 1, 1')
    a('v_xor_b32 v20, v20, v2')
    a('v_lshl_add_u32 v19, v20, 10, v19')
    a('v_and_b32 v20, 1, v1')
    a('v_lshl_add_u32 v19, v20, 4, v19')
    a('s_lshl_b32 s%d, s%d, 5' % (T1, CT))
    a('s_add_u32 s%d, s%d, 1024' % (T1, T1))
    a('v_add_u32 v%d, s%d, v19' % (VKV, T1))
    a('s_lshl_b32 s%d, s%d, 13' % (XL, WV))
    a('s_mul_i32 s%d, s%d, %d' % (WL, WV, TG))
    a('s_add_u32 s%d, s%d, %d' % (WL, WL, WREG))
    a('s_lshl_b32 s%d, s%d, 6' % (SGS, RB))
    a('s_mov_b32 s%d, 0' % SX)
    a('s_mov_b32 s%d, 0' % SG)
    a('s_mov_b32 s%d, 0' % SKV)
    srd(a, S_X, P_X, 2048 * 1024)
    a('s_cmp_eq_u32 s%d, 0' % CT2)
    a('s_cselect_b64 s[%d:%d], s[%d:%d], s[%d:%d]' % (P_WG, P_WG + 1, P_QKV, P_QKV + 1, P_WG, P_WG + 1))
    a('s_cselect_b64 s[%d:%d], s[%d:%d], s[%d:%d]' % (P_WU, P_WU + 1, P_QKV, P_QKV + 1, P_WU, P_WU + 1))
    a('s_lshl_b32 s%d, s%d, 9' % (T0, RB))
    srd(a, S_G, P_WG, 's%d' % T0)
    srd(a, S_U, P_WU, 's%d' % T0)
    srd(a, S_KV, P_QKV, 512 * 3072)

    def dma(stage):
        sb = SLOTB[stage % 3]
        r = []
        for half in range(2):
            r.append('s_add_u32 m0, s%d, %d' % (XL, sb + half * 4096))
            r.append('s_nop 0')
            for q in range(4):
                r.append('buffer_load_dwordx4 v%d, %s, s%d offen offset:%d lds' % (VX + half * 4 + q, sr(S_X, 4), SX, q * 1024))
        r.append('s_add_u32 m0, s%d, %d' % (WL, sb))
        r.append('s_add_u32 s%d, s%d, 128' % (SX, SX))
        for q in range(2):
            r.append('buffer_load_dwordx4 v%d, %s, s%d offen offset:%d lds' % (VG + q, sr(S_G, 4), SG, q * 1024))
        r.append('s_add_u32 m0, s%d, %d' % (WL, sb + 2048))
        r.append('s_nop 0')
        for q in range(2):
            r.append('buffer_load_dwordx4 v%d, %s, s%d offen offset:%d lds' % (VU + q, sr(S_U, 4), SG, q * 1024))
        r.append('s_add_u32 m0, s%d, %d' % (WL, sb + 4096))
        r.append('s_add_u32 s%d, s%d, s%d' % (SG, SG, SGS))
        r.append('buffer_load_dwordx4 v%d, %s, s%d offen lds' % (VKV, sr(S_KV, 4), SKV))
        r.append('s_add_u32 s%d, s%d, %d' % (SKV, SKV, 64 * 3072))
        return [(x, stage) for x in r]

    def emit(lst, n=None):
        c = 0
        while lst and (n is None or c < n):
            t, st = lst.pop(0)
            if t.startswith('buffer_load'):
                vm.op(t, 'D%d' % st)
                c += 1
            else:
                a(t)

    if NT0:
        vm.wait('T0')
    stamp(a, 1)
    emit(dma(0))
    d1 = dma(1)
    emit(d1, PRE)
    srd(a, S_WS, P_WS, WS_SIZE)
    srd(a, S_W2, P_WD, 1792 * 1024)
    srd(a, S_OUT, P_OUT, 2048 * 1024)
    srd(a, S_DBG, P_DBG, 256)
    srd(a, S_GW, P_GW, 1024)
    GXA, GWA, GOA, DBA = 20, 21, 22, 23
    GX, GWR = 192, 200
    a('v_and_b32 v16, 31, v1')
    a('v_lshlrev_b32 v%d, 4, v16' % GWA)
    a('v_lshl_add_u32 v%d, v2, 10, v%d' % (GXA, GWA))
    a('v_lshlrev_b32 v%d, 4, v2' % GOA)
    a('v_lshlrev_b32 v%d, 2, v16' % DBA)
    a('v_lshrrev_b32 v16, 3, v1')
    a('s_lshl_b32 s%d, s%d, 7' % (T0, CT2))
    a('v_lshl_add_u32 v16, v16, 10, s%d' % T0)
    a('v_bfe_u32 v17, v1, 1, 2')
    a('v_xor_b32 v17, v17, v3')
    a('v_lshl_add_u32 v16, v17, 5, v16')
    a('v_and_b32 v17, 1, v1')
    a('v_lshl_add_u32 v%d, v17, 4, v16' % VW2)
    for j in range(1, 4):
        a('v_add_u32 v%d, %d, v%d' % (VW2 + j, j * 7168, VW2))
    p2_scalars(a, 0)
    a('s_lshl_b32 s%d, s%d, 15' % (SWB, T1))
    a('s_add_u32 s%d, s%d, %d' % (SWE, SWB, 14 * 32768))
    a('s_lshl_b32 s%d, s%d, 15' % (T2, T0))
    a('s_add_u32 s%d, s%d, s%d' % (SW, SWB, T2))
    ta_addr(a, TA, 16)
    lspf = [c for c in SPF if c.isdigit()]
    if lspf:
        a('s_lshl_b32 s%d, s2, 2' % T0)
        a('s_add_u32 s%d, s%d, s%d' % (T0, T0, W))
        a('s_mul_i32 s%d, s%d, 1792' % (T1, T0))
        a('s_add_u32 s%d, s%d, s%d' % (P_WD, P_WD, T1))
        a('s_addc_u32 s%d, s%d, 0' % (P_WD + 1, P_WD + 1))
        a('s_lshl_b32 s%d, s%d, 9' % (T1, T0))
        a('s_add_u32 s%d, s%d, s%d' % (P_WG, P_WO, T1))
        a('s_addc_u32 s%d, s%d, 0' % (P_WG + 1, P_WO + 1))
    spl = ['s_load_dword s3, %s, 0x%x' % (sr(P_WD, 2), i * 64) for i in range(28)] + \
          ['s_load_dword s3, %s, 0x%x' % (sr(P_WG, 2), i * 64) for i in range(8)]
    winc = ['s_add_u32 s%d, s%d, 32768' % (SW, SW), 's_cmp_eq_u32 s%d, s%d' % (SW, SWE),
            's_cselect_b32 s%d, s%d, s%d' % (SW, SWB, SW)]
    stamp(a, 2)
    vm.wait('D0')
    a('s_barrier')
    stamp(a, 3)
    stamp(a, 45, True)
    emit(d1)
    WR = 48
    ACC2 = 192

    def wd(name):
        isO = name[0] == 'O'
        a('s_add_u32 m0, s%d, %d' % (UB, UNIT[name]))
        if name == 'O0':
            a('s_lshl_b32 s%d, s%d, 17' % (SW, W))
        else:
            a('s_nop 0')
        for j in range(4):
            vm.op('buffer_load_dwordx4 v%d, %s, s%d offen offset:%d lds' % (VW2 + j, sr(S_GW if isO else S_W2, 4), SW, j * 1024), name)
        a(winc[:1] if isO else winc)

    def wr(i):
        vm.wait('S%d' % i)
        for r in w2_reads(TA, WR + 16 * i, UNIT['S%d' % i]):
            lg.op(r, 'R%d' % i)

    def gate_fin():
        vm.wait('GL')
        a('v_dot2_f32_bf16 v16, v%d, v%d, 0' % (GX, GWR))
        a('v_dot2_f32_bf16 v17, v%d, v%d, 0' % (GX + 1, GWR + 1))
        for n in range(2, 8):
            a('v_dot2_f32_bf16 v%d, v%d, v%d, v%d' % (16 + (n & 1), GX + n, GWR + n, 16 + (n & 1)))
        a('s_lshl_b32 s%d, s%d, 2' % (T0, RT))
        a('s_lshr_b32 s%d, s%d, 3' % (T1, CT))
        a('s_add_u32 s%d, s%d, s%d' % (T0, T0, T1))
        a('s_lshl_b32 s%d, s%d, 8' % (T0, T0))
        a('s_lshl_b32 s%d, s%d, 2' % (T1, CT2))
        a('s_add_u32 s%d, s%d, s%d' % (T1, T1, W))
        a('v_add_f32 v16, v16, v17')
        a('s_and_b32 s%d, s%d, 7' % (T2, T1))
        a('s_lshl_b32 s%d, s%d, 5' % (T2, T2))
        a('v_add_f32_dpp v16, v16, v16 quad_perm:[1,0,3,2] row_mask:0xf bank_mask:0xf')
        a('s_lshr_b32 s%d, s%d, 3' % (T1, T1))
        a('s_lshl_b32 s%d, s%d, 2' % (T1, T1))
        a('v_add_f32_dpp v16, v16, v16 quad_perm:[2,3,0,1] row_mask:0xf bank_mask:0xf')
        a('s_add_u32 s%d, s%d, s%d' % (T0, T0, T1))
        a('s_add_u32 s%d, s%d, s%d' % (T0, T0, T2))
        a('v_add_f32_dpp v16, v16, v16 row_half_mirror row_mask:0xf bank_mask:0xf')
        a('s_add_u32 s%d, s%d, 0x%x' % (T0, T0, B_G))
        a('v_add_f32_dpp v16, v16, v16 row_mirror row_mask:0xf bank_mask:0xf')
        a('v_add_f32_dpp v16, v16, v16 row_bcast:15 row_mask:0xa bank_mask:0xf')
        a('v_cvt_pk_bf16_f32 v16, v16, v16')
        a('v_lshlrev_b32 v16, 16, v16')
        a('v_mul_f32 v16, 0x%x, v16' % NLOG2E)
        a('v_exp_f32 v16, v16')
        a('v_add_f32 v16, 1.0, v16')
        a('v_rcp_f32 v16, v16')
        a('s_mov_b32 exec_lo, 0x10000')
        a('s_mov_b32 exec_hi, 0x10000')
        a('v_cvt_pk_bf16_f32 v16, v16, v16')
        a('v_lshl_or_b32 v16, v16, 16, 1')
        vm.op('buffer_store_dword v16, v%d, %s, s%d offen sc1' % (GOA, sr(S_WS, 4), T0), 'GS')
        a('s_mov_b64 exec, -1')

    for s in range(7):
        tnow = NT0 and tcount[0] < 4 and s % 2 == 0
        if tnow and not TPOS:
            touch()
        if s + 2 < 8:
            emit(dma(s + 2))
        if tnow and TPOS:
            touch()
        if str(s) in lspf:
            n = (36 + len(lspf) - 1) // len(lspf)
            for t in spl[:n]:
                a(t)
            spl = spl[n:]
        if s == 4:
            vm.op('buffer_load_dword v%d, v%d, %s, 0 offen sc1' % (DBV, DBA, sr(S_DBG, 4)), 'I')
        if s == GST:
            a('s_lshl_b32 s%d, s%d, 5' % (T0, RT))
            a('s_add_u32 s%d, s%d, s%d' % (T0, T0, CT))
            a('s_lshl_b32 s%d, s%d, 2' % (T0, T0))
            a('s_add_u32 s%d, s%d, s%d' % (T0, T0, W))
            a('s_lshl_b32 s%d, s%d, 11' % (T0, T0))
            for n in range(2):
                vm.op('buffer_load_dwordx4 %s, v%d, %s, s%d offen offset:%d' % (vr(GX + 4 * n, 4), GXA, sr(S_X, 4), T0, n * 512), 'GL')
                vm.op('buffer_load_dwordx4 %s, v%d, %s, 0 offen offset:%d' % (vr(GWR + 4 * n, 4), GWA, sr(S_GW, 4), n * 512), 'GL')
        if s == 5:
            vm.wait('I')
            n = 'k_init'
            a('v_cmp_ne_u32 vcc, 0, v%d' % DBV)
            a('s_cmp_eq_u64 vcc, -1')
            a('s_cbranch_scc0 %s' % n)
            a.label(n + '_ok')
            slow(n, ['buffer_load_dword v%d, v%d, %s, 0 offen sc1' % (DBV, DBA, sr(S_DBG, 4)), 's_waitcnt vmcnt(0)',
                     'v_cmp_ne_u32 vcc, 0, v%d' % DBV], ['s_cmp_eq_u64 vcc, -1'])
        if s == 6:
            for i in range(3):
                wd('S%d' % i)
            gate_fin()
            srd(a, S_GW, P_WO, 512 * 1024)
            a('s_waitcnt lgkmcnt(0)')
        ls = LST or s >= 5
        if ls:
            stamp(a, 5 + 3 * s)
        vm.wait('D%d' % (s + 1))
        if ls:
            stamp(a, 6 + 3 * s)
        a('s_barrier')
        if ls:
            stamp(a, 7 + 3 * s)
            stamp(a, 46 + s, True)
    if PR7:
        a('s_setprio 0')
    for i in (3, 4, 5):
        wd('S%d' % i)
    for i in range(3):
        wr(i)
        lg.all()
        wd('S%d' % (6 + i))
    stamp(a, 26)
    for i in range(NPRE):
        wr(3 + i)
        lg.all()
        wd('C%d' % i)
    a('v_lshlrev_b32 v24, 2, v1')
    a('s_lshr_b32 s%d, s%d, 1' % (T0, W))
    a('s_mul_i32 s%d, s%d, %d' % (T0, T0, SLOT - 4096))
    a('s_lshl_b32 s%d, s%d, 11' % (T1, W))
    a('s_add_u32 s%d, s%d, s%d' % (T0, T0, T1))
    a('s_add_u32 s%d, s%d, %d' % (T0, T0, SLOT))
    a('v_add_u32 v25, s%d, v24' % T0)
    a('v_and_b32 v26, 12, v24')
    a('v_add_u32 v26, s%d, v26' % T0)
    a('s_lshl_b32 s%d, s%d, 2' % (T0, CT))
    a('s_add_u32 s%d, s%d, s%d' % (T0, T0, W))
    a('s_lshl_b32 s%d, s%d, 8' % (T1, T0))
    a('s_add_u32 s%d, s%d, 0x%x' % (T1, T1, WS_BLK))
    a('s_lshl_b32 s%d, s%d, 4' % (T2, T0))
    a('s_add_u32 s%d, s%d, 0x%x' % (T2, T2, B_Z))
    a('s_lshl_b32 s%d, s%d, 3' % (T3, CT))
    a('s_add_u32 s%d, s%d, s%d' % (T3, T3, RT))
    a('s_lshl_b32 s%d, s%d, 2' % (T3, T3))
    a('s_add_u32 s%d, s%d, 0x%x' % (T3, T3, B_KF))
    a('s_lshl_b32 s%d, s%d, 5' % (T0, W))
    a('v_mov_b32 v0, s%d' % T0)
    stamp(a, 27)
    a('s_barrier')
    stamp(a, 28)
    stamp(a, 53, True)
    for w in range(4):
        lg.op('ds_read_b32 v%d, v25 offset:%d' % (16 + w, w * 256), 'kv')
    for w in range(4):
        lg.op('ds_read_b32 v%d, v26 offset:%d' % (20 + w, 1024 + w * 256), 'kv')
    a('v_mov_b32 v27, 1')
    a('s_waitcnt lgkmcnt(4)')
    a('v_add_f32 v16, v16, v17')
    a('v_add_f32 v18, v18, v19')
    a('v_add_f32 v16, v16, v18')
    vm.op('buffer_atomic_add_f32 v16, v24, %s, s%d offen' % (sr(S_WS, 4), T1), 'AT')
    lg.all()
    a('v_add_f32 v20, v20, v21')
    a('v_add_f32 v22, v22, v23')
    a('v_add_f32 v20, v20, v22')
    a('s_mov_b64 exec, 15')
    vm.op('buffer_atomic_add_f32 v20, v24, %s, s%d offen' % (sr(S_WS, 4), T2), 'AT')
    a('s_mov_b64 exec, -1')
    stamp(a, 30)

    def lflag(tag, val):
        vm.wait(tag)
        a('v_mov_b32 v15, %d' % val)
        lg.op('ds_write_b32 v0, v15 offset:%d' % L_LF, 'LF')

    for i in range(NPRE, 3):
        wr(3 + i)
        lg.all()
        wd('C%d' % i)
    wd('C3')
    wd('C4')
    wd('O0')
    for i in (6, 7, 8):
        wr(i)
    if NPRE == 3:
        lflag('C2', 3)
    stamp(a, 31)
    a('v_mov_b32 v26, 0')
    vm.wait('AT')
    a('s_mov_b64 exec, 1')
    lg.op('ds_add_rtn_u32 v25, v26, v27 offset:%d' % L_KC, 'KC')
    lg.all()
    a('v_cmp_eq_u32 vcc, 3, v25')
    a('s_cbranch_vccz k_nokf')
    a('buffer_store_dword v27, off, %s, s%d sc1' % (sr(S_WS, 4), T3))
    a.label('k_nokf')
    a('s_mov_b64 exec, -1')
    vm.op(fl_load(15), 'P')
    stamp(a, 32)
    vm.wait('P')
    a('v_cmp_ne_u32 vcc, 0, v15')
    a('s_mov_b32 s%d, vcc_lo' % MASK)
    lflag('O0', 6)
    lg.all()
    free = [16, 32]
    ag = {}
    nxt = [0]

    def aload():
        if nxt[0] < NS and free:
            i = nxt[0]; nxt[0] += 1
            g = free.pop(0); ag[i] = g
            a_load(a, vm, g, 'A%d' % i, 15)
            return True
        return False

    aload()
    stamp(a, 33)
    stamp(a, 56, True)
    aload()
    wd('O1')
    PW = 16
    KN = SX
    for i in range(NS):
        vm.wait('A%d' % i)
        if i == 2:
            lflag('O1', 7)
        if i == 4:
            lflag('O3', 9)
        if i == NS - 1:
            a('s_mov_b32 s%d, 0' % KN)
            lds_ensure(a, KN, 0, L_RF, 15, 1)
        pend = []
        for cb in range(4):
            for sb in range(4):
                d = ACC2 + (cb * 4 + sb) * 4
                a(mf(d, WR + 16 * i + 4 * cb, ag[i] + 4 * sb, '0' if i == 0 else None))
                if i == NS - 1:
                    pend.append(part_w(PW, UBB, ACC2, PART_L, cb, sb))
                    if len(pend) > 5:
                        a(pend.pop(0))
        a(pend)
        free.append(ag[i]); free.append(WR + 16 * i)
        while aload():
            pass
        if i == 0:
            wd('O2')
            wd('O3')
        if i == NS - 3:
            PW = free.pop(0)
            part_addr(a, PW, UBB)
            final_addr(a, FA)
        if i in (3, 7):
            stamp(a, 34 + i // 4)
    stamp(a, 36)
    a('s_waitcnt lgkmcnt(0)')
    stamp(a, 37)
    a('s_barrier')
    stamp(a, 38)
    a('s_branch k_final')


def gen_compute(a):
    a.label('k_C')
    vm = Cnt(a, 'vmcnt', 63)
    XS = [32, 48]
    WRING = 64
    XA, WA, KA = 84, 86, 90
    NL = 92
    KW = 93
    ON = 28
    ACC = 96

    def acc(cb, sb):
        return ACC + (cb * 4 + sb) * 4

    a('s_waitcnt lgkmcnt(0)')
    srd(a, S_WS, P_WS, WS_SIZE)
    srd(a, S_DBG, P_DBG, 256)
    for j in range(4):
        a('v_mov_b32 v%d, 0' % (16 + j))
    a('s_lshl_b32 s%d, s%d, 5' % (T0, W))
    a('v_mov_b32 v0, s%d' % T0)
    a('ds_write_b32 v0, v16 offset:%d' % L_LF)
    a('ds_write_b32 v0, v16 offset:%d' % L_RF)
    a('ds_write_b32 v16, v16 offset:%d' % L_KC)
    a('s_mov_b32 s%d, -1' % INITF)
    a('s_cmp_ge_u32 s2, 32')
    a('s_cbranch_scc1 k_noinit')
    a('s_cmp_lg_u32 s%d, 3' % W)
    a('s_cbranch_scc1 k_noinit')
    a('s_lshl_b32 s%d, s2, 11' % T0)
    a('s_add_u32 s%d, s%d, 0x%x' % (T0, T0, WS_BLK))
    a('buffer_store_dwordx4 v[16:19], v5, %s, s%d offen sc1' % (sr(S_WS, 4), T0))
    a('buffer_store_dwordx4 v[16:19], v5, %s, s%d offen offset:1024 sc1' % (sr(S_WS, 4), T0))
    a('s_mov_b32 s%d, 1' % INITF)
    a.label('k_noinit')
    COLD.append(['k_doinit:', 's_lshl_b32 s%d, s2, 2' % T0, 'v_mov_b32 v20, 1', 's_waitcnt vmcnt(0)', 's_mov_b64 exec, 1',
                 'buffer_store_dword v20, off, %s, s%d sc1' % (sr(S_DBG, 4), T0), 's_mov_b64 exec, -1', 's_branch k_doinit_ok'])
    a('s_lshl_b32 s%d, s%d, 13' % (T0, W))
    a('s_add_u32 s%d, s%d, %d' % (T0, T0, SLOTB[0]))
    a('v_lshl_add_u32 v20, v4, 7, s%d' % T0)
    a('v_bfe_u32 v21, v4, 1, 3')
    a('v_xor_b32 v21, v21, v3')
    a('v_lshl_add_u32 v%d, v21, 4, v20' % XA)
    a('v_xor_b32 v%d, 64, v%d' % (XA + 1, XA))
    a('v_lshrrev_b32 v20, 1, v3')
    a('v_mul_u32_u24 v20, %d, v20' % TG)
    a('v_and_b32 v21, 3, v4')
    a('v_lshl_add_u32 v20, v21, 3, v20')
    a('v_add_u32 v20, %d, v20' % (SLOTB[0] + WREG))
    a('v_and_b32 v21, 1, v3')
    a('v_lshrrev_b32 v22, 2, v4')
    a('v_lshl_add_u32 v22, v21, 3, v22')
    a('v_lshl_add_u32 v23, v22, 6, v20')
    a('v_lshl_add_u32 v%d, v21, 5, v23' % KA)
    a('v_add_u32 v%d, 4096, v%d' % (KA, KA))
    a('v_xor_b32 v%d, 32, v%d' % (KA + 1, KA))
    a('v_lshl_add_u32 v23, v22, 7, v20')
    a('v_bfe_u32 v22, v1, 3, 2')
    for cb in range(4):
        a('v_xor_b32 v24, %d, v22' % cb)
        a('v_lshl_add_u32 v%d, v24, 5, v23' % (WA + cb))
    a('v_lshrrev_b32 v20, 1, v3')
    a('v_mul_u32_u24 v20, %d, v20' % (SLOT - 4096))
    a('v_lshl_add_u32 v20, v3, 11, v20')
    a('v_lshl_add_u32 v20, v4, 4, v20')
    a('s_lshl_b32 s%d, s%d, 8' % (T0, W))
    a('s_add_u32 s%d, s%d, %d' % (T0, T0, SLOT))
    a('v_add_u32 v%d, s%d, v20' % (KW, T0))
    a('v_mov_b32 v%d, 0x%x' % (NL, NLOG2E))
    a('s_mov_b32 s%d, 0x%x' % (L2E, LOG2E))
    a('s_mov_b32 s%d, 0' % SLOTI)
    a('s_mov_b32 s%d, 0' % CNT)
    srd(a, S_OUT, P_OUT, 2048 * 1024)
    p2_scalars(a, NS)
    TAa, TAc = 6, 10
    ta_addr(a, TAa, 20)
    for cb in range(4):
        a('v_add_u32 v%d, 0x%x, v%d' % (TAc + cb, UC, TAa + cb))
    a('s_lshl_b32 s%d, s%d, 2' % (T0, RT))
    a('s_add_u32 s%d, s%d, s%d' % (T0, T0, W))
    a('s_lshr_b32 s%d, s%d, 6' % (T1, GOFF))
    a('s_add_u32 s%d, s%d, 56' % (T2, T1))
    a('s_cmp_eq_u32 s%d, 0' % CT2)
    a('s_cselect_b32 s%d, s%d, s%d' % (T1, T2, T1))
    a('s_cselect_b32 s%d, 1.0, 0' % T3)
    a('s_mul_i32 s%d, s%d, 72' % (T2, T0))
    a('s_add_u32 s%d, s%d, s%d' % (T2, T2, T1))
    a('s_lshl_b32 s%d, s%d, 12' % (STB, T2))
    a('s_add_u32 s%d, s%d, 4096' % (STB2, STB))
    a('s_lshl_b32 s%d, s%d, 2' % (T0, T0))
    a('s_lshr_b32 s%d, s%d, 3' % (T1, CT))
    a('s_add_u32 s%d, s%d, s%d' % (T0, T0, T1))
    a('s_lshl_b32 s%d, s%d, 7' % (T0, T0))
    a('s_cmp_eq_u32 s%d, 0' % CT2)
    a('s_cselect_b32 s%d, 9, s%d' % (T1, CT2))
    a('s_lshl_b32 s%d, s%d, 3' % (T1, T1))
    a('s_add_u32 s%d, s%d, s%d' % (FLA, T0, T1))
    a('s_add_u32 s%d, s%d, 0x%x' % (FLA, FLA, B_FL - 8))
    for r in range(32, 160):
        a('v_mov_b32 v%d, s%d' % (ACC + r, T3))
    for r in range(16):
        a('v_mov_b32 v%d, 1.0' % (ACC + r))
    for r in range(16, 32):
        a('v_mov_b32 v%d, 0' % (ACC + r))

    def wread(f, cb, kk):
        d = WRING + 4 * (f % 5)
        if cb < 2:
            ad, off, st = KA + cb, kk * 2 * TG, 256
        else:
            ad, off, st = WA + (cb - 2) // 2, kk * 2 * TG + ((cb - 2) & 1) * 2048, 512
        return ['ds_read_b64_tr_b16 %s, v%d offset:%d' % (vr(d, 2), ad, off),
                'ds_read_b64_tr_b16 %s, v%d offset:%d' % (vr(d + 2, 2), ad, off + st)]

    def xread(kk, sb):
        return 'ds_read_b128 %s, v%d offset:%d' % (vr(XS[kk] + 4 * sb, 4), XA + kk, sb * 2048)

    def mma(f, cb, kk, sb):
        w = WRING + 4 * (f % 5)
        x = XS[kk] + 4 * sb
        return mf(acc(cb, sb), x, w) if cb < 2 else mf(acc(cb, sb), w, x)

    CBO = [2, 3, 4, 5, 6, 7, 8, 9, 0, 1]
    NORM = [(cb, kk) for kk in range(2) for cb in CBO]

    def head_ops():
        r = []
        w0, w1, w2 = wread(0, 2, 0), wread(1, 3, 0), wread(2, 4, 0)
        r += [(0, w0[0], 'W0'), (0, w0[1], 'W0'), (1, xread(0, 0), 'X00'), (2, xread(0, 1), 'X01'), (3, xread(0, 2), 'X02'),
              (4, xread(0, 3), 'X03'), (5, w1[0], 'W1'), (6, w1[1], 'W1'), (8, w2[0], 'W2'), (9, w2[1], 'W2')]
        return r

    def stage(lg, order, gaps, nread=20):
        seen = set()
        for f, (cb, kk) in enumerate(order):
            if f + 3 < nread:
                c2, k2 = order[f + 3]
                w = wread(f + 3, c2, k2)
                gaps.setdefault(4 * f, []).insert(0, (w[0], 'W%d' % (f + 3)))
                gaps.setdefault(4 * f + 1, []).insert(0, (w[1], 'W%d' % (f + 3)))
        for f, (cb, kk) in enumerate(order):
            for sb in range(4):
                if sb == 0:
                    lg.wait('W%d' % f)
                if (kk, sb) not in seen:
                    seen.add((kk, sb))
                    lg.wait('X%d%d' % (kk, sb))
                a(mma(f, cb, kk, sb))
                for t, tag in gaps.get(4 * f + sb, []):
                    if t == 'BAR':
                        lg.all()
                        stamp(a, 'm0')
                        if DIAG:
                            a('s_add_u32 m0, m0, 1')
                        a('s_barrier')
                        stamp(a, 'm0')
                        if DIAG:
                            a('s_add_u32 m0, m0, 1')
                    elif t.endswith(':'):
                        a.label(t[:-1])
                    elif tag and tag.startswith('vm'):
                        vm.op(t, tag)
                    elif tag:
                        lg.op(t, tag)
                    else:
                        a(t)
        for g in sorted(gaps):
            if g >= 4 * len(order):
                for t, tag in gaps[g]:
                    if tag and tag.startswith('vm'):
                        vm.op(t, tag)
                    elif tag:
                        lg.op(t, tag)
                    else:
                        a(t)

    stamp(a, 1)
    if 'c' in SPF:
        a('s_lshl_b32 s%d, s2, 2' % T0)
        a('s_add_u32 s%d, s%d, s%d' % (T0, T0, W))
        a('s_mul_i32 s%d, s%d, 1792' % (T1, T0))
        a('s_add_u32 s%d, s%d, s%d' % (P_WD, P_WD, T1))
        a('s_addc_u32 s%d, s%d, 0' % (P_WD + 1, P_WD + 1))
        a('s_lshl_b32 s%d, s%d, 9' % (T1, T0))
        a('s_add_u32 s%d, s%d, s%d' % (P_WO, P_WO, T1))
        a('s_addc_u32 s%d, s%d, 0' % (P_WO + 1, P_WO + 1))
        for i in range(28):
            a('s_load_dword s3, %s, 0x%x' % (sr(P_WD, 2), i * 64))
        for i in range(8):
            a('s_load_dword s3, %s, 0x%x' % (sr(P_WO, 2), i * 64))
    a('s_waitcnt lgkmcnt(0)')
    a('s_barrier')
    stamp(a, 2)
    stamp(a, 58, True)
    if DIAG:
        a('s_mov_b32 m0, 3')
    lg = Cnt(a, 'lgkmcnt', 15)
    for _, t, tag in head_ops():
        lg.op(t, tag)
    a.raw('.p2align 3')
    a.label('k_loop')
    gaps = {}

    def add(g, t, tag=None):
        gaps.setdefault(g, []).append((t, tag))

    for sb in range(4):
        add(4 * (2 + sb) + 2, xread(1, sb), 'X1%d' % sb)
    add(3, 's_add_u32 s%d, s%d, 1' % (SLOTI, SLOTI))
    add(3, 's_cmp_eq_u32 s%d, 2' % SLOTI)
    add(6, 's_mov_b32 s%d, %d' % (DELTA, SLOT))
    add(6, 's_cselect_b32 s%d, 0x%x, s%d' % (DELTA, (-2 * SLOT) & 0xffffffff, DELTA))
    add(7, 's_cmp_eq_u32 s%d, 3' % SLOTI)
    add(7, 's_cselect_b32 s%d, 0, s%d' % (SLOTI, SLOTI))
    add(11, 's_cmp_eq_u32 s%d, s%d' % (CNT, INITF))
    add(11, 's_cbranch_scc1 k_doinit')
    add(11, 'k_doinit_ok:')
    for g, r in ((26, XA), (30, XA + 1), (34, WA), (42, WA + 1), (50, WA + 2), (58, WA + 3), (62, KA), (66, KA + 1)):
        add(g, 'v_add_u32 v%d, s%d, v%d' % (r, DELTA, r))
    add(4 * 16 + 3, 'BAR')
    for g, t, tag in head_ops():
        add(4 * 17 + g, t, tag)
    add(4 * 19 + 2, 's_add_u32 s%d, s%d, 1' % (CNT, CNT))
    add(4 * 19 + 2, 's_cmp_lt_u32 s%d, 7' % CNT)
    stage(lg, NORM, gaps)
    a('s_cbranch_scc1 k_loop')
    if PR7:
        a('s_setprio 2')
    a('s_cmp_eq_u32 s%d, 0' % CT2)
    a('s_cbranch_scc1 k_lastQ')

    def kv_ops(TP):
        fl = []
        for g in range(4):
            for r in range(4):
                fl.append(('v_fma_f32 v%d, v%d, s%d, v%d' % (TP + 4 * g + r, ACC + 4 * g + r, L2E, NL), 1))
        for g in range(4):
            for r in range(4):
                fl.append(('v_exp_f32_e64 v%d, v%d clamp' % (TP + 4 * g + r, TP + 4 * g + r), 2))
            if g >= 1:
                for r in range(4):
                    fl.append(('v_max_f32 v%d, v%d, v%d' % (TP + 4 * (g - 1) + r, TP + 4 * (g - 1) + r, ACC + 4 * (g - 1) + r), 1))
        for r in range(4):
            fl.append(('v_max_f32 v%d, v%d, v%d' % (TP + 12 + r, TP + 12 + r, ACC + 12 + r), 1))
        for r in range(16):
            fl.append(('v_add_f32 v%d, 0x%x, v%d' % (TP + r, EPS, TP + r), 1))
        for j in range(8):
            fl.append(('v_cvt_pk_bf16_f32 v%d, v%d, v%d' % (ACC + j, TP + 2 * j, TP + 2 * j + 1), 1))
        for j in range(8):
            fl.append(('v_cvt_pk_bf16_f32 v%d, v%d, v%d' % (ACC + 8 + j, ACC + 16 + 2 * j, ACC + 17 + 2 * j), 1))
        for j in range(4):
            fl.append(('v_mov_b32 v%d, 0x%x' % (ACC + 16 + j, ONES), 1))
        mm = [mf(TP + 4, ACC, ACC + 8, '0'), mf(TP + 8, ACC, ACC + 16, '0'), mf(TP + 4, ACC + 4, ACC + 12), mf(TP + 8, ACC + 4, ACC + 16)]
        ww = ['ds_write_b128 v%d, %s' % (KW, vr(TP + 4, 4)), 'ds_write_b128 v%d, %s offset:1024' % (KW, vr(TP + 8, 4))]
        return fl, mm, ww

    def spread(fl, g, lastread):
        while fl:
            used = 1 if ((g % 4) < 2 and g < lastread) else 0
            n = 0
            while fl and (used + fl[0][1] <= FILL or n == 0 and used == 0):
                x = fl.pop(0)
                add(g, x[0], x[2] if len(x) > 2 else None)
                used += x[1]
                n += 1
            g += 1
        return g

    lg0 = list(lg.ops), lg.done
    LASTF = [(2, 0), (3, 0), (4, 0), (5, 0), (2, 1), (3, 1), (4, 1), (5, 1), (6, 0), (7, 0), (8, 0), (9, 0),
             (6, 1), (7, 1), (8, 1), (9, 1), (0, 0), (1, 0), (0, 1), (1, 1)]
    gaps = {}
    for sb in range(4):
        add(2 + sb + (sb >> 1) * 2, xread(1, sb), 'X1%d' % sb)

    def h_ops(hf):
        fl = []
        for sb in range(4):
            gA, uA, gB, uB = (acc(2 + 4 * hf + k, sb) for k in range(4))
            for j in range(4):
                fl.append(('v_mul_f32 v%d, v%d, v%d' % (gA + j, gA + j, uA + j), 1))
            for j in range(4):
                fl.append(('v_mul_f32 v%d, v%d, v%d' % (gB + j, gB + j, uB + j), 1))
            fl.append(('v_cvt_pk_bf16_f32 v%d, v%d, v%d' % (gA, gA, gA + 1), 1))
            fl.append(('v_cvt_pk_bf16_f32 v%d, v%d, v%d' % (gA + 1, gA + 2, gA + 3), 1))
            fl.append(('v_cvt_pk_bf16_f32 v%d, v%d, v%d' % (gA + 2, gB, gB + 1), 1))
            fl.append(('v_cvt_pk_bf16_f32 v%d, v%d, v%d' % (gA + 3, gB + 2, gB + 3), 1))
            fl.append(('buffer_store_dwordx4 %s, v5, %s, s%d offen offset:%d sc1' % (vr(gA, 4), sr(S_WS, 4), STB + hf, sb * 1024), 1, 'vmH%d' % hf))
        return fl

    g = spread(h_ops(0), 30, 68)
    g = spread(h_ops(1), max(g, 62), 68)
    stage(lg, LASTF, gaps)
    stamp(a, 20)
    stamp(a, 59, True)
    fl, mm, ww = kv_ops(16)
    for x in fl:
        a(x[0])
    a(mm)
    a('v_mov_b32 v15, 1')
    a(ww)
    a('s_waitcnt lgkmcnt(0)')
    stamp(a, 21)
    a('s_barrier')
    for hf in range(2):
        vm.wait('vmH%d' % hf)
        a('s_mov_b64 exec, 1')
        vm.op('buffer_store_dword v15, off, %s, s%d offset:%d sc1' % (sr(S_WS, 4), FLA, 4 * hf), 'F')
        a('s_mov_b64 exec, -1')
    a('s_branch k_p2')
    a.label('k_lastQ')
    lg.ops, lg.done = list(lg0[0]), lg0[1]
    vm = Cnt(a, 'vmcnt', 63)
    LASTQ = [(2, 0), (3, 0), (4, 0), (0, 0), (1, 0), (0, 1), (1, 1), (2, 1), (4, 1), (6, 0), (8, 0), (6, 1), (8, 1),
             (5, 0), (3, 1), (5, 1), (7, 0), (9, 0), (7, 1), (9, 1)]
    gaps = {}
    for sb in range(4):
        add(2 + sb + (sb >> 1) * 2, xread(1, sb), 'X1%d' % sb)
    fl, mm, ww = kv_ops(16)
    g = spread(fl, 4 * 6 + 2, 68)
    for k, t in enumerate(mm):
        add(g + 1 + k, t)
    stage(lg, LASTQ, gaps)
    stamp(a, 20)
    stamp(a, 59, True)
    a('s_mov_b32 s%d, 0x%x' % (SW, EPS))
    a('s_mov_b32 s%d, 0x%x' % (SW + 1, EPS))
    a('s_mov_b32 s%d, 0x%x' % (T0, LOG2E))
    a('s_mov_b32 s%d, 0x%x' % (T0 + 1, LOG2E))
    a('v_mov_b32 v15, 1')
    a(ww)
    pairs = [(2, 4), (6, 8), (3, 5), (7, 9)]

    def qflag(i):
        vm.wait('Q%d' % i)
        a('s_mov_b64 exec, 1')
        vm.op('buffer_store_dword v15, off, %s, s%d offset:%d sc1' % (sr(S_WS, 4), FLA, 4 * i), 'F')
        a('s_mov_b64 exec, -1')

    nf = 0
    for i, (cA, cB) in enumerate(pairs):
        for sb in range(4):
            rr = [acc(cA, sb), acc(cA, sb) + 2, acc(cB, sb), acc(cB, sb) + 2]
            tp = 32 + (sb & 1) * 8
            for j, r in enumerate(rr):
                a('v_pk_fma_f32 %s, %s, %s, %s op_sel_hi:[1,1,0]' % (vr(tp + 2 * j, 2), vr(r, 2), sr(T0, 2), vr(NL, 2)))
            for j in range(8):
                a('v_exp_f32_e64 v%d, v%d clamp' % (tp + j, tp + j))
            for j in range(8):
                a('v_max_f32 v%d, v%d, v%d' % (tp + j, tp + j, rr[j >> 1] + (j & 1)))
            for j in range(4):
                a('v_pk_add_f32 %s, %s, %s' % (vr(tp + 2 * j, 2), vr(tp + 2 * j, 2), sr(SW, 2)))
            for j in range(4):
                a('v_cvt_pk_bf16_f32 v%d, v%d, v%d' % (rr[0] + j, tp + 2 * j, tp + 2 * j + 1))
            vm.op('buffer_store_dwordx4 %s, v5, %s, s%d offen offset:%d sc1' % (vr(rr[0], 4), sr(S_WS, 4), STB, sb * 1024), 'Q%d' % i)
            k = 4 * i + sb + 1
            if k == QBAR:
                a('s_waitcnt lgkmcnt(0)')
                stamp(a, 21)
                a('s_barrier')
            if k >= 4 * (nf + 1) + QLAG:
                qflag(nf)
                nf += 1
        a('s_add_u32 s%d, s%d, 4096' % (STB, STB))
    while nf < 4:
        qflag(nf)
        nf += 1
    a.label('k_p2')
    stamp(a, 22)
    stamp(a, 57, True)
    a('s_setprio %d' % PC2)
    vm = Cnt(a, 'vmcnt', 63)
    lg = Cnt(a, 'lgkmcnt', 15)
    WF = [16, 32]
    AG = [48 + 16 * n for n in range(5)]
    PQ = [128, 144, 160, 128]
    GC, GE, KFD, KFA, ZA, GA, PD = 176, 180, 184, 188, 189, 190, 191
    ACC2 = 192
    KVF, ZF = 48, 80
    KN = DELTA
    SEL = S_T
    SK = STB2
    a('s_mov_b32 s%d, 0' % KN)
    a_load(a, vm, AG[0], 'A0', PD)
    stamp(a, 23)
    for n in range(1, 5):
        a_load(a, vm, AG[n], 'A%d' % n, PD)
    SKF, SZ, SGA = S_T + 2, S_T + 3, FLA
    a('v_lshlrev_b32 v%d, 2, v1' % KFA)
    a('v_bfe_u32 v%d, v4, 1, 1' % GC)
    a('v_lshlrev_b32 v%d, 4, v3' % (GC + 1))
    a('v_lshl_add_u32 v%d, v%d, 6, v%d' % (ZA, GC, GC + 1))
    a('v_cmp_ne_u32 s[%d:%d], 0, v%d' % (SEL, SEL + 1, GC))
    a('v_lshlrev_b32 v%d, 4, v4' % GA)
    a('s_lshl_b32 s%d, s%d, 13' % (SK, W))
    a('s_add_u32 s%d, s%d, 0x%x' % (SK, SK, WS_BLK))
    a('s_lshl_b32 s%d, s%d, 8' % (SKF, W))
    a('s_add_u32 s%d, s%d, 0x%x' % (SKF, SKF, B_KF))
    a('s_lshl_b32 s%d, s%d, 9' % (SZ, W))
    a('s_add_u32 s%d, s%d, 0x%x' % (SZ, SZ, B_Z))
    a('s_lshl_b32 s%d, s%d, 8' % (SGA, RT2))
    a('s_add_u32 s%d, s%d, 0x%x' % (SGA, SGA, B_G))
    a('s_mul_i32 s%d, s%d, 72' % (SA, RT2))
    a('s_lshl_b32 s%d, s%d, 2' % (T3, W))
    a('s_add_u32 s%d, s%d, s%d' % (SA, SA, T3))
    a('s_add_u32 s%d, s%d, 56' % (SA, SA))
    a('s_lshl_b32 s%d, s%d, 12' % (SA, SA))
    names = ['C0', 'C1', 'C2', 'C3', 'C4', 'O0', 'O1', 'O2', 'O3']

    def wreads(n):
        u = UNIT[names[n]]
        return w2_reads(TAc, WF[n & 1], u - UC) if u >= UC else w2_reads(TAa, WF[n & 1], u)

    kg_loads = ['buffer_load_dword v%d, v%d, %s, s%d offen sc1' % (KFD, KFA, sr(S_WS, 4), SKF),
                'buffer_load_dwordx4 %s, v%d, %s, s%d offen sc1' % (vr(GC, 4), GA, sr(S_WS, 4), SGA)]
    kg_test = ['v_and_b32 v%d, v%d, v%d' % (KFD + 1, GC, GC + 1), 'v_and_b32 v%d, v%d, v%d' % (KFD + 3, GC + 2, GC + 3),
               'v_and_b32 v%d, v%d, v%d' % (KFD + 1, KFD + 1, KFD + 3),
               'v_and_b32 v%d, v%d, v%d' % (KFD, KFD, KFD + 1),
               'v_cmp_ne_u32 vcc, 0, v%d' % KFD, 's_cmp_eq_u64 vcc, -1']

    def pq_load(i):
        ensure(a, PD, '%d' % (16 + i))
        for sb in range(4):
            vm.op('buffer_load_dwordx4 %s, v5, %s, s%d offen offset:%d sc1' % (vr(PQ[i] + 4 * sb, 4), sr(S_WS, 4), SA, sb * 1024), 'PQ%d' % i)
        a('s_add_u32 s%d, s%d, 4096' % (SA, SA))

    def take_mask(tag):
        vm.wait(tag)
        a('v_cmp_ne_u32 vcc, 0, v%d' % PD)
        a('s_mov_b32 s%d, vcc_lo' % MASK)

    lds_ensure(a, KN, 0, L_LF, KFD, 1)
    for r in wreads(0):
        lg.op(r, 'R0')
    stamp(a, 24)
    for n in range(5):
        lds_ensure(a, KN, 0, L_LF, GE, n + 2)
        pre = wreads(n + 1)
        vm.wait('A%d' % n)
        lg.wait('R%d' % n)
        if n == 3:
            pre = ['ds_write_b32 v0, v15 offset:%d' % L_RF] + pre
        k = 0
        for cb in range(4):
            for sb in range(4):
                a(mf(ACC2 + (cb * 4 + sb) * 4, WF[n & 1] + 4 * cb, AG[n] + 4 * sb, '0' if n == 0 else None))
                if k < len(pre) and cb * 4 + sb >= 3:
                    lg.op(pre[k], 'R%d' % (n + 1)); k += 1
        if n == P1AT:
            vm.op(fl_load(PD), 'P1')
            for l in kg_loads:
                vm.op(l, 'P1')
        if n == 3:
            stamp(a, 25)
            take_mask('P1')
            a(kg_test)
            a('s_cbranch_scc0 k_kg')
            a.label('k_kg_ok')
            slow('k_kg', kg_loads + ['s_waitcnt vmcnt(0)'], kg_test)
            stamp(a, 26)
            for i in range(4):
                vm.op('buffer_load_dwordx4 %s, v5, %s, s%d offen sc1' % (vr(KVF + 8 * i, 4), sr(S_WS, 4), SK), 'K%d' % i)
                vm.op('buffer_load_dwordx4 %s, v5, %s, s%d offen offset:1024 sc1' % (vr(KVF + 8 * i + 4, 4), sr(S_WS, 4), SK), 'K%d' % i)
                vm.op('buffer_load_dwordx4 %s, v%d, %s, s%d offen offset:%d sc1' % (vr(ZF + 4 * i, 4), ZA, sr(S_WS, 4), SZ, 128 * i), 'K%d' % i)
                a('s_add_u32 s%d, s%d, 2048' % (SK, SK))
                if i == 0:
                    pq_load(0)
            pq_load(1)
            vm.op(fl_load(PD), 'P2')
            stamp(a, 27)
            for j in range(4):
                a('v_and_b32 v%d, 0xffff0000, v%d' % (GC + j, GC + j))
            for j in range(4):
                a('v_sub_f32 v%d, 1.0, v%d' % (KFD + j, GC + j))
            for j in range(4):
                a('v_rcp_f32 v%d, v%d' % (GC + j, GC + j))
            for j in range(4):
                a('v_cvt_pk_bf16_f32 v%d, v%d, v%d' % (KFD + j, KFD + j, KFD + j))
            for j in range(4):
                a('v_and_b32 v%d, 0xffff0000, v%d' % (KFD + j, KFD + j))
            for j in range(4):
                a('v_max_f32 v%d, 0x%x, v%d' % (KFD + j, TINY, KFD + j))
            for j in range(4):
                a('v_mul_f32 v%d, v%d, v%d' % (GC + j, GC + j, KFD + j))
            lg.op('ds_write_b128 v%d, %s offset:%d' % (GA, vr(KFD, 4), L_S), 'SW')
    for j in range(4):
        a('v_mul_f32 v%d, 0x%x, v%d' % (GE + j, EPS, GC + j))
    stamp(a, 28)

    def kconv(i):
        r = []
        for j in range(4):
            r.append('v_cvt_pk_bf16_f32 v%d, v%d, v%d' % (KVF + 8 * i + j, KVF + 8 * i + 2 * j, KVF + 8 * i + 2 * j + 1))
        z = ZF + 4 * i
        r.append('v_cvt_pk_bf16_f32 v%d, v%d, v%d' % (z, z, z + 1))
        r.append('v_cvt_pk_bf16_f32 v%d, v%d, v%d' % (z + 1, z + 2, z + 3))
        for j in range(2):
            r.append('v_cndmask_b32 v%d, 0, v%d, s[%d:%d]' % (z + 2 + j, z + j, SEL, SEL + 1))
        for j in range(2):
            r.append('v_cndmask_b32 v%d, v%d, 0, s[%d:%d]' % (z + j, z + j, SEL, SEL + 1))
        return r

    ND = [(96, 100, 104), (108, 112, 116), (120, 124, KVF + 4)]
    PWA = KVF + 12

    def S_(k):
        i, sb = divmod(k, 4)
        nA, nB, dn = ND[k % 3]
        pq = PQ[i] + 4 * sb
        return [mf(dn, ZF + 4 * i, pq, '0'), mf16(nA, KVF + 8 * i, pq, '0'), mf16(nB, KVF + 8 * i + 2, pq + 2, '0')]

    def V_(k):
        i, sb = divmod(k, 4)
        nA, nB, dn = ND[k % 3]
        pq = PQ[i] + 4 * sb
        r = ['v_fma_f32 v%d, v%d, v%d, v%d' % (dn, dn, GC + sb, GE + sb),
             'v_fma_f32 v%d, v%d, v%d, v%d' % (dn + 2, dn + 2, GC + sb, GE + sb),
             'v_rcp_f32 v%d, v%d' % (dn, dn), 'v_rcp_f32 v%d, v%d' % (dn + 2, dn + 2)]
        for j in range(4):
            r.append('v_mul_f32 v%d, v%d, v%d' % (nA + j, nA + j, dn))
        for j in range(4):
            r.append('v_mul_f32 v%d, v%d, v%d' % (nB + j, nB + j, dn + 2))
        r += ['v_cvt_pk_bf16_f32 v%d, v%d, v%d' % (pq, nA, nA + 1), 'v_cvt_pk_bf16_f32 v%d, v%d, v%d' % (pq + 1, nA + 2, nA + 3),
              'v_cvt_pk_bf16_f32 v%d, v%d, v%d' % (pq + 2, nB, nB + 1), 'v_cvt_pk_bf16_f32 v%d, v%d, v%d' % (pq + 3, nB + 2, nB + 3)]
        return r

    def B_(k):
        i, sb = divmod(k, 4)
        return [mf(ACC2 + (cb * 4 + sb) * 4, WF[(5 + i) & 1] + 4 * cb, PQ[i] + 4 * sb) for cb in range(4)]

    vm.wait('K0')
    a(kconv(0))
    wq = []
    pend = []
    for k in range(-2, 16):
        ms = []
        if k + 2 < 16:
            i, sb = divmod(k + 2, 4)
            if sb == 0:
                vm.wait('PQ%d' % i)
            ms += S_(k + 2)
        if k >= 0:
            i, sb = divmod(k, 4)
            if sb == 0:
                lg.wait('R%d' % (5 + i))
                if i < 3:
                    lds_ensure(a, KN, 0, L_LF, KFD, 7 + i)
                    wq = [(r, 'R%d' % (6 + i)) for r in wreads(6 + i)]
            ms += B_(k)
        vs = V_(k + 1) if 0 <= k + 1 < 16 else []
        if k in (-1, 0, 1):
            vm.wait('K%d' % (k + 2))
            vs = vs + kconv(k + 2)
        per = (len(vs) + len(ms) - 1) // len(ms)
        for j, m in enumerate(ms):
            a(m)
            if wq and j in (1, 4, 6):
                lg.op(*wq.pop(0))
            if pend:
                lg.op(pend.pop(0), 'PW')
            for t in vs[j * per:(j + 1) * per]:
                a(t)
        if k >= 12:
            pend += [part_w(PWA, UC, ACC2, PART_C, cb, k - 12) for cb in range(4)]
        if k == 1:
            take_mask('P2')
            pq_load(2)
            vm.op(fl_load(PD), 'P3')
            stamp(a, 29)
        if k == 5:
            take_mask('P3')
            pq_load(3)
            stamp(a, 30)
        if k == 9:
            part_addr(a, PWA, UC)
        if k == 12:
            final_addr(a, FA)
    a(pend)
    stamp(a, 36)
    a('s_waitcnt lgkmcnt(0)')
    stamp(a, 37)
    a('s_barrier')
    stamp(a, 38)
    a.label('k_final')
    final(a)
    stamp_out(a)


def kd(a, name, vgpr, sgpr):
    a.raw('.p2align 6')
    a.raw('.amdhsa_kernel %s' % name)
    a.raw('  .amdhsa_next_free_vgpr %d' % vgpr)
    a.raw('  .amdhsa_next_free_sgpr %d' % sgpr)
    a.raw('  .amdhsa_accum_offset %d' % ((vgpr + 3) // 4 * 4))
    a.raw('  .amdhsa_group_segment_fixed_size 0')
    a.raw('  .amdhsa_kernarg_size 88')
    a.raw('  .amdhsa_user_sgpr_count 2')
    a.raw('  .amdhsa_user_sgpr_kernarg_segment_ptr 1')
    a.raw('  .amdhsa_system_sgpr_workgroup_id_x 1')
    a.raw('.end_amdhsa_kernel')


def main(out):
    a = Asm()
    hdr = open('cdna_kernels/%s.s.ref' % NAME).read().split('\n')
    for line in hdr:
        if line.startswith(';') and '@launch' not in line and 'Override launch' not in line and 'grid=ceil' not in line:
            a.raw(line)
    a.raw('; @launch grid=(256,1,1) block=(512,1,1) lds=%d' % LDS)
    a.raw('.amdgcn_target "amdgcn-amd-amdhsa--gfx950"')
    a.raw('.text')
    gen(a)
    n = a.fix(verbose=bool(env('VERB', 0)))
    a.raw('.section .rodata,"a"')
    kd(a, NAME + '_kernel', 256, 100)
    open(out, 'w').write(a.text())
    print('pads inserted:', n, 'lines', len(a.l))


if __name__ == '__main__':
    main(sys.argv[1])
```
